```python
import torch

def _softmax(x, axis=-1):
    return torch.softmax(x, dim=axis)
def _gelu(x):
    return torch.nn.functional.gelu(x, approximate="tanh")
def _silu(x):
    return torch.nn.functional.silu(x)
def _sigmoid(x):
    return torch.sigmoid(x)
def _layernorm(x, axis=-1, eps=1e-5):
    m = x.mean(dim=axis, keepdim=True)
    v = x.var(dim=axis, keepdim=True, unbiased=False)
    return (x - m) / torch.sqrt(v + eps)
def _scatter_add(tgt, idx, src, axis=0):
    return tgt.clone().index_add_(axis, idx, src)
def _segment_sum(src, seg, n):
    out = torch.zeros((n,) + src.shape[1:], dtype=src.dtype)
    return out.index_add_(0, seg, src)
def _pad(x, pw):
    flat = tuple(v for pair in reversed(pw) for v in pair)
    return torch.nn.functional.pad(x, flat)

kernel_name = 'sequential_preLN__sliding_block_cached__mixer_token_mlp__decode'

def setup_inputs():

    _w = (lambda a: (lambda t: t.to(torch.bfloat16) if t.is_floating_point() else t)(torch.as_tensor(a)))
    def _A_setup():
        B, Sq, D = 8, 1, 448
        Hq, Hkv, Sk, Dh = 16, 8, 4096, 256
        assert Hq % Hkv == 0, (Hq, Hkv)
        return {
            "x": _w((lambda *s: torch.randn(*s, dtype=torch.bfloat16) * 0.05)(B, Sq, D)),
            "k_cache": _w((lambda *s: torch.randn(*s, dtype=torch.bfloat16) * 0.8)(B, Hkv, Sk, Dh)),
            "v_cache": _w((lambda *s: torch.randn(*s, dtype=torch.bfloat16) * 0.8)(B, Hkv, Sk, Dh)),
            "wq": _w((lambda *s: torch.randn(*s, dtype=torch.bfloat16) * 0.8)(D, Hq * Dh) * (D ** -0.5)),
            "wo": _w((lambda *s: torch.randn(*s, dtype=torch.bfloat16) * 0.8)(Hq * Dh, D) * ((Hq * Dh) ** -0.5)),
        }
    _A_in = _A_setup()

    def _B_setup():
        B, S, D, F = 8, 1, 448, 1792
        return {
            "x": _w((lambda *s: torch.randn(*s, dtype=torch.bfloat16) * 0.05)(B, S, D)),
            "w1": _w((lambda *s: torch.randn(*s, dtype=torch.bfloat16) * 0.2)(S, F) * (S ** -0.5)),
            "b1": _w((lambda *s: torch.randn(*s, dtype=torch.bfloat16) * 0.2)(F) * 0.02),
            "w2": _w((lambda *s: torch.randn(*s, dtype=torch.bfloat16) * 0.2)(F, S) * (F ** -0.5)),
            "b2": _w((lambda *s: torch.randn(*s, dtype=torch.bfloat16) * 0.2)(S) * 0.02),
        }
    _B_in = _B_setup()

    return {
        "A_x": _A_in["x"],
        "A_k_cache": _A_in["k_cache"],
        "A_v_cache": _A_in["v_cache"],
        "A_wq": _A_in["wq"],
        "A_wo": _A_in["wo"],
        "B_x": _B_in["x"],
        "B_w1": _B_in["w1"],
        "B_b1": _B_in["b1"],
        "B_w2": _B_in["w2"],
        "B_b2": _B_in["b2"],
    }

def reference(A_x, A_k_cache, A_v_cache, A_wq, A_wo, B_x, B_w1, B_b1, B_w2, B_b2):
    def _A_ref(x, k_cache, v_cache, wq, wo):
        B, Sq, D = x.shape
        Hq, Dh = 16, 256
        Hkv, Sk = k_cache.shape[1], k_cache.shape[2]
        W = min(4096, max(256, Sk // 4))
        rep = Hq // Hkv
        q = (lambda x, *d: x.permute(*d))((x @ wq).reshape(B, Sq, Hq, Dh), 0, 2, 1, 3)
        k = (lambda x, n, axis: torch.repeat_interleave(x, n, dim=axis))(k_cache[:, :, Sk - W:, :], rep, axis=1)
        v = (lambda x, n, axis: torch.repeat_interleave(x, n, dim=axis))(v_cache[:, :, Sk - W:, :], rep, axis=1)
        scores = torch.einsum("bhqd,bhkd->bhqk", q, k) * (Dh ** -0.5)
        p = _softmax(scores, axis=-1)
        o = torch.einsum("bhqk,bhkd->bhqd", p, v)
        return (lambda x, *d: x.permute(*d))(o, 0, 2, 1, 3).reshape(B, Sq, Hq * Dh) @ wo

    def _B_ref(x, w1, b1, w2, b2):
        B, S, D = x.shape
        h = _layernorm(x, axis=-1)
        u = torch.einsum("bsd,sf->bdf", h, w1) + b1
        u = _gelu(u)
        y = torch.einsum("bdf,fs->bds", u, w2) + b2
        return (lambda x, *d: x.permute(*d))(y, 0, 2, 1)

    x = A_x
    h = x + _A_ref(_layernorm(x, axis=-1), A_k_cache, A_v_cache, A_wq, A_wo)
    h2 = h + _B_ref(_layernorm(h, axis=-1), B_w1, B_b1, B_w2, B_b2)
    return h2
```

```python
import re
def regs(tok):
    tok = tok.strip()
    tok = tok.replace("-|", "").replace("|", "").lstrip("-")
    m = re.fullmatch(r"abs\((.*)\)", tok)
    if m: tok = m.group(1)
    m = re.fullmatch(r"([vsa])\[(\d+):(\d+)\]", tok)
    if m: return {(m.group(1), i) for i in range(int(m.group(2)), int(m.group(3)) + 1)}
    m = re.fullmatch(r"([vsa])(\d+)", tok)
    if m: return {(m.group(1), int(m.group(2)))}
    if tok in ("vcc", "vcc_lo", "vcc_hi"): return {("s", "vcc")}
    if tok == "m0": return {("s", "m0")}
    if tok.startswith("exec"): return {("s", "exec")}
    return set()
TRANS = ("v_exp_", "v_log_", "v_rcp_", "v_rsq_", "v_sqrt_", "v_sin_", "v_cos_")
def parse(line):
    line = line.split(";")[0].strip()
    if not line or line.endswith(":") or line.startswith("."): return None
    p = line.split(None, 1)
    op = p[0]; ops = []
    if len(p) > 1:
        ops = [x.strip() for x in re.split(r",(?![^\[]*\])", p[1])]
        ops = [x.split()[0] if x else x for x in ops]
    d = dict(op=op, line=line, w=set(), r=set())
    R = [regs(x) for x in ops]
    isv = op.startswith("v_")
    d["valu"] = isv and not op.startswith(("v_mfma", "v_smfmac"))
    d["mfma"] = op.startswith(("v_mfma", "v_smfmac"))
    d["dpp"] = "_dpp" in op
    d["trans"] = op.startswith(TRANS)
    d["vmem"] = op.startswith(("buffer_", "global_"))
    d["ds"] = op.startswith("ds_")
    if isv:
        d["w"] = set(R[0]); d["r"] = set().union(*R[1:]) if len(R) > 1 else set()
        if op.startswith(("v_fmac", "v_dot2c", "v_smfmac", "v_writelane")) or (d["dpp"]): d["r"] |= R[0]
        if op.startswith("v_permlane"): d["w"] |= R[1]; d["r"] |= R[0]
        if "_co_" in op: d["w"] |= R[1]
        if d["mfma"]:
            d["A"], d["B"], d["C"] = R[1], R[2], (R[0] if op.startswith("v_smfmac") else R[3])
            d["passes"] = 8 if ("32x32x16" in op or "16x16x4_f32" in op) else (16 if "32x32x2_f32" in op else 4)
            d["sgemm"] = op.endswith("_f32") and op.count("f32") == 2
    elif d["vmem"]:
        if "load" in op and " lds" not in line: d["w"] = set(R[0]); d["r"] = set().union(*R[1:])
        else: d["r"] = set().union(*R)
        if " lds" in line: d["r"] |= {("s", "m0")}
        d["widestore"] = "store" in op and ("x4" in op or "x3" in op)
        if d["widestore"]: d["data"] = R[0] if op.startswith("buffer") else R[1]
    elif d["ds"]:
        if "read" in op or "rtn" in op or "permute" in op or "swizzle" in op: d["w"] = set(R[0]); d["r"] = set().union(*R[1:])
        else: d["r"] = set().union(*R)
    elif op.startswith("s_"):
        if op.startswith(("s_cmp", "s_bitcmp", "s_cbranch", "s_waitcnt", "s_nop", "s_barrier", "s_sleep", "s_setprio", "s_branch", "s_endpgm")):
            d["r"] = set().union(*R) if R else set()
        else:
            d["w"] = set(R[0]) if R else set(); d["r"] = set().union(*R[1:]) if len(R) > 1 else set()
    d["states"] = (int(ops[0], 0) + 1) if op == "s_nop" else 1
    return d
def check(text):
    ins = [x for x in (parse(l) for l in text.splitlines()) if x]
    bad = []
    for i, c in enumerate(ins):
        dist = 0
        for j in range(i - 1, max(-1, i - 24), -1):
            p = ins[j]
            if p["op"] in ("s_branch", "s_endpgm"): break
            need = 0; why = ""
            V = lambda s: {x for x in s if x[0] in "va"}
            S = lambda s: {x for x in s if x[0] == "s"}
            if p["valu"]:
                if c["mfma"] and V(p["w"]) & c["r"]: need, why = 2, "valu->mfma"
                if c["dpp"] and V(p["w"]) & c["r"]: need, why = 2, "valu->dpp"
                if c["op"].startswith("v_permlane") and V(p["w"]) & c["r"]: need, why = 2, "valu->permlane"
                if c["op"].startswith(("v_readlane", "v_readfirstlane")) and V(p["w"]) & c["r"]: need, why = max(need, 1), "valu->readlane"
                if p["trans"] and c["valu"] and not c["trans"] and V(p["w"]) & c["r"]: need, why = max(need, 1), "trans->valu"
                if S(p["w"]) & c["r"]:
                    if c["vmem"]: need, why = 5, "valu sgpr->vmem"
                    elif c["op"].startswith(("v_readlane", "v_writelane")): need, why = 4, "valu sgpr->lanesel"
                    elif c["valu"]: need, why = max(need, 2), "valu sgpr->valu"
                if p["op"].startswith("v_dot") and (c["valu"] or c["mfma"]) and V(p["w"]) & (c["r"] | c["w"]) and c["op"] != p["op"]: need, why = 3, "dot->other"
            if p["mfma"]:
                ps = p["passes"]; sg = p["sgemm"]
                big = ({4: 6, 8: 10, 16: 18} if sg else {4: 8, 8: 12, 16: 20})[ps]
                if c["mfma"]:
                    if p["w"] & (c["A"] | c["B"]): need, why = big, "mfma->mfma AB"
                    elif p["w"] & c["C"] and not (p["w"] == c["C"] and p["op"] == c["op"]): need, why = {4: 6, 8: 10, 16: 18}[ps], "mfma->mfma C overlap"
                elif (c["valu"] or c["vmem"] or c["ds"]) and p["w"] & (c["r"] | c["w"]): need, why = big, "mfma D->use"
                if c["valu"] and not sg and p["C"] & c["w"]: need, why = max(need, {4: 3, 8: 7, 16: 15}[ps]), why or "mfma C WAR"
            if p.get("widestore") and (p["data"] & c["w"]): need, why = max(need, 2), "store WAR"
            if p["op"].startswith("s_") and ("s", "m0") in p["w"] and c["vmem"] and ("s", "m0") in c["r"]: need, why = 1, "m0->dma"
            if need > dist: bad.append(f"{why}: need {need} have {dist}: [{p['line']}] -> [{c['line']}]")
            dist += p["states"]
            if dist >= 20: break
    return bad
if __name__ == "__main__":
    import sys
    for b in check(open(sys.argv[1]).read()): print(b)
```

```python
import math, struct, sys
KN = "sequential_preLN__sliding_block_cached__mixer_token_mlp__decode_kernel"

def f32(x): return "0x%08x" % struct.unpack("<I", struct.pack("<f", x))[0]

WS_E, WS_Q, WS_S, WS_P, WS_T, WS_STAMP, WS_SIZE = 0, 0x10000, 0x40000, 0xC0000, 0x140000, 0x200000, 0x400000
KM, KX, M = 26624, 106496, 139264
L_WQ, L_XS, L_P, L_Q, L_O, L_TS, L_FL = M, 153600, 153600, 160768, 161792, 162560, 162688
L_H, L_TPOS, L_TNEG, L_FB = 16384, 0, 131072, 32768
F_KISS, F_Q, F_P, F_T, F_QK, F_FIN, F_CLR, F_TAG = [4 * i for i in range(8)]
NT = 24
ELO = 132 - NT
LOG2E = math.log2(math.e)
K0 = -2.0 * math.sqrt(2.0 / math.pi) * LOG2E
K1 = K0 * 0.044715

class G:
    def __init__(s, **opt):
        s.L = []; s.o = opt; s.n = 0
    def A(s, x):
        for l in x.strip("\n").split("\n"): s.L.append(l.strip())
    def lab(s, p):
        s.n += 1; return f"L_{p}{s.n}"
    def stamp(s, k):
        if s.o.get("stamps"):
            s.A(f"s_memrealtime s[{80+2*k}:{81+2*k}]\ns_waitcnt lgkmcnt(0)")
    def srd(s, d, lo, size):
        s.A(f"s_mov_b32 s{d}, s{lo}\ns_mov_b32 s{d+1}, s{lo+1}\ns_mov_b32 s{d+2}, {size}\ns_mov_b32 s{d+3}, 0x20000")
    def lds_inc(s, flag, tmp=("v1",)):
        s.A(f"s_mov_b64 exec, 1\nv_mov_b32 {tmp[0]}, 1\nds_add_u32 v255, {tmp[0]} offset:{flag}\ns_mov_b64 exec, -1")
    def lds_wait(s, flag, val, tmp="v1"):
        l, d = s.lab("spin"), s.lab("spind")
        s.A(f"""s_mov_b32 s78, 0x40000
        {l}:
        ds_read_b32 {tmp}, v255 offset:{flag}
        s_waitcnt lgkmcnt(0)
        v_readfirstlane_b32 s79, {tmp}
        s_cmp_ge_u32 s79, {val}
        s_cbranch_scc1 {d}
        s_sleep 1
        s_sub_u32 s78, s78, 1
        s_cbranch_scc0 {l}
        {d}:""")
    def umax(s, dst, regs):
        r = list(regs)
        s.A(f"v_max3_u32 {dst}, v{r[0]}, v{r[1]}, v{r[2]}"); r = r[3:]
        while len(r) >= 2:
            s.A(f"v_max3_u32 {dst}, {dst}, v{r[0]}, v{r[1]}"); r = r[2:]
        if r: s.A(f"v_max_u32 {dst}, {dst}, v{r[0]}")
    def wave_reduce(s, op, vs):
        pad = {1: "s_nop 1", 2: "s_nop 0"}.get(len(vs))
        s.A("s_nop 1")
        for i, m in enumerate(("row_ror:8 row_mask:0xf", "row_ror:4 row_mask:0xf", "row_ror:2 row_mask:0xf", "row_ror:1 row_mask:0xf",
                  "row_bcast:15 row_mask:0xa", "row_bcast:31 row_mask:0xc")):
            for v in vs: s.A(f"{op}_dpp {v}, {v}, {v} {m} bank_mask:0xf")
            if pad: s.A(pad)
    def transpose_pair(s, src, dst, t):
        for q in range(4):
            a, b = src + 8 * t + q, src + 8 * t + 4 + q
            s.A(f"v_perm_b32 v{dst + 8*q + t}, v{b}, v{a}, s76")
            s.A(f"v_perm_b32 v{dst + 8*q + 4 + t}, v{b}, v{a}, s77")

def gen(**opt):
    g = G(**opt); A = g.A
    PB = opt.get("pollbound", 0x4000)
    A(f"; @launch grid=(256,1,1) block=(512,1,1) lds=163840")
    A('.amdgcn_target "amdgcn-amd-amdhsa--gfx950"')
    A(f".text\n.globl {KN}\n.p2align 8\n.type {KN},@function\n{KN}:")
    g.stamp(0)
    A(f"""s_cmp_ge_u32 s2, 256
    s_cbranch_scc1 L_end
    s_load_dwordx16 s[4:19], s[0:1], 0
    s_load_dwordx8 s[20:27], s[0:1], 64
    s_load_dwordx2 s[28:29], s[0:1], 96
    v_lshrrev_b32 v1, 6, v0
    v_and_b32 v0, 63, v0
    v_readfirstlane_b32 s3, v1
    s_and_b32 s30, s2, 7
    s_lshr_b32 s33, s2, 3
    s_lshr_b32 s31, s33, 2
    s_and_b32 s32, s33, 3
    s_lshl_b32 s35, s31, 3
    s_add_u32 s35, s35, s30
    s_lshl_b32 s34, s35, 21
    s_add_u32 s34, s34, 0x180000
    s_mov_b32 s76, 0x05040100
    s_mov_b32 s77, 0x07060302
    v_mov_b32 v255, {L_FL}
    s_cmp_eq_u32 s30, s31
    s_cselect_b32 s75, s32, 0
    s_cmp_ge_u32 s3, 4
    s_cbranch_scc1 L_vwave""")
    A(f"""s_setprio 2
    v_lshrrev_b32 v1, 5, v0
    v_and_b32 v2, 31, v0
    v_xor_b32 v2, v2, v1
    v_lshlrev_b32 v2, 4, v2
    v_lshl_add_u32 v240, v1, 9, v2""")
    for j in range(1, 8): A(f"v_xor_b32 v{240+j}, {32*j}, v240")
    A(f"""v_and_b32 v2, 7, v0
    v_lshlrev_b32 v2, 4, v2
    v_lshrrev_b32 v1, 3, v0
    v_mul_u32_u24 v1, {8*896}, v1
    v_add_u32 v248, v1, v2
    s_cmp_eq_u32 s3, 3
    s_cselect_b32 s50, 0x40000000, 512
    v_add_u32 v249, s50, v248
    s_lshl_b32 s50, s3, 2
    s_add_u32 s50, s50, s32
    s_lshl_b32 s50, s50, 10
    s_add_u32 s50, s50, s34
    s_lshl_b32 s51, s32, 3
    s_add_u32 s51, s51, s3
    s_lshl_b32 s51, s51, 12
    s_add_u32 s51, s51, s34
    s_add_u32 s51, s51, {832*512}
    s_mul_i32 s52, s3, {KM}
    s_lshl_b32 s53, s3, 13
    s_add_u32 s53, s53, {KX}
    s_lshl_b32 s54, s30, 3
    s_add_u32 s54, s54, s32
    s_mul_i32 s54, s54, {64*896}
    s_lshl_b32 s55, s3, 7
    s_add_u32 s54, s54, s55
    s_waitcnt lgkmcnt(0)""")
    g.srd(36, 6, 0x8000000); g.srd(40, 12, 4096 * 896); g.srd(44, 28, WS_SIZE)
    wl = [(cg, h, i) for cg in range(2) for h in range(2) for i in range(8)]
    def wo_load(n):
        cg, h, i = wl[n]
        if i % 4 == 0: A(f"s_add_u32 s56, s54, {h*256*896 + i*896}")
        r = 40 + n * 4
        A(f"buffer_load_dwordx4 v[{r}:{r+3}], v{248+cg}, s[40:43], s56 offen offset:{(i%4)*896} nt")
    nwo = 0
    for n in range(26):
        if n == opt.get("b0at", 3):
            A("s_barrier")
            A("s_cmp_eq_u32 s32, 3\ns_cbranch_scc1 L_nox")
            for x in range(8):
                A(f"s_add_u32 m0, s53, {x*1024}\ns_add_u32 s57, s51, {(32*(x&1) + 2*(x>>1))*512}")
                if opt.get("kthr"): A(f"s_waitcnt vmcnt({opt['kthr']})")
                A(f"buffer_load_dwordx4 v{240+x}, s[36:39], s57 offen nt lds")
            A("L_nox:")
        A(f"s_add_u32 m0, s52, {n*1024}\ns_add_u32 s57, s50, {n*16384}")
        if opt.get("kthr"): A(f"s_waitcnt vmcnt({opt['kthr']})")
        A(f"buffer_load_dwordx4 v{240+n%8}, s[36:39], s57 offen nt lds")
        while nwo < 32 * (n + 1) // 26: wo_load(nwo); nwo += 1
    g.lds_inc(F_KISS)
    g.stamp(1)
    A(f"""v_and_b32 v1, 15, v0
    v_lshrrev_b32 v2, 4, v0
    v_xor_b32 v3, v1, v2
    v_lshlrev_b32 v3, 4, v3
    v_lshl_add_u32 v3, v1, 9, v3
    v_add_u32 v250, s52, v3
    v_xor_b32 v251, 64, v250
    v_xor_b32 v252, 128, v250
    v_xor_b32 v253, 192, v250
    v_and_b32 v3, 1, v0
    v_lshlrev_b32 v254, 9, v3
    v_lshl_add_u32 v254, v2, 4, v254
    v_add_u32 v254, {L_Q}, v254
    v_lshlrev_b32 v3, 12, v3
    v_lshl_add_u32 v248, v2, 4, v3
    v_lshl_add_u32 v249, v2, 6, v3
    s_lshl_b32 s58, s35, 13
    s_add_u32 s58, s58, {WS_S}
    s_lshl_b32 s59, s3, 10
    s_add_u32 s59, s59, s58
    s_lshl_b32 s60, s32, 4
    s_add_u32 s60, s60, s59
    s_lshl_b32 s61, s32, 6
    s_add_u32 s59, s59, s61
    s_sub_u32 s61, s53, s52""")
    g.lds_wait(F_Q, 1)
    for i in range(8): A(f"ds_read_b128 v[{8+4*i}:{11+4*i}], v254 offset:{i*64}")
    g.stamp(2)
    A("s_waitcnt vmcnt(0)")
    g.stamp(3)
    DREG = [232, 236, 240, 244, 4]
    def kread(t, buf):
        for i in range(8):
            A(f"ds_read_b128 v[{buf+4*i}:{buf+4*i+3}], v{250+i%4} offset:{(t%4)*8192 + (i//4)*256}")
    def kmma(t, buf, more):
        d = DREG[t]
        for i in range(8):
            A(f"s_waitcnt lgkmcnt({7 - i + more})")
            A(f"v_mfma_f32_16x16x32_bf16 v[{d}:{d+3}], v[{buf+4*i}:{buf+4*i+3}], v[{8+4*i}:{11+4*i}], " + ("0" if i == 0 else f"v[{d}:{d+3}]"))
    bufs = [168, 200]
    A("s_waitcnt lgkmcnt(0)")
    kread(0, bufs[0])
    for t in range(5):
        if t < 4:
            if t == 3:
                for i in range(4): A(f"v_add_u32 v{250+i}, s61, v{250+i}")
            kread(t + 1, bufs[(t + 1) % 2])
        kmma(t, bufs[t % 2], 8 if t < 4 else 0)
    A("s_mov_b32 exec_lo, 0x00030003\ns_mov_b32 exec_hi, 0x00030003")
    for t in range(3):
        A(f"buffer_store_dwordx4 v[{DREG[t]}:{DREG[t]+3}], v248, s[44:47], s59 offen offset:{t*256} sc1")
    A(f"""s_cmp_eq_u32 s32, 3
    s_cbranch_scc1 L_nox2
    s_nop 1
    buffer_store_dwordx4 v[4:7], v249, s[44:47], s60 offen offset:784 sc1
    L_nox2:
    s_mov_b64 exec, 3
    buffer_store_dwordx4 v[244:247], v248, s[44:47], s59 offen offset:768 sc1""")
    g.lds_inc(F_QK)
    g.stamp(4)
    for u in range(4):
        for t in range(4): g.transpose_pair(40 + 32 * u, 8 + 32 * u, t)
    A("""s_cmp_ge_u32 s3, 2
    s_cbranch_scc1 L_k23""")
    A(f"""v_lshlrev_b32 v2, 4, v0
    s_lshl_b32 s59, s3, 12
    s_add_u32 s59, s59, s58
    v_lshrrev_b32 v3, 4, v0
    v_lshlrev_b32 v3, 8, v3
    v_and_b32 v4, 15, v0
    v_lshl_add_u32 v3, v4, 2, v3
    s_lshl_b32 s60, s3, 6
    s_add_u32 s60, s60, {L_P}
    v_add_u32 v3, s60, v3
    s_mov_b32 s78, {PB}
    L_spoll:""")
    for i in range(4): A(f"buffer_load_dwordx4 v[{168+4*i}:{171+4*i}], v2, s[44:47], s59 offen offset:{i*1024} sc1")
    A("s_waitcnt vmcnt(0)")
    g.umax("v4", range(168, 184))
    A(f"""v_cmp_eq_u32 vcc, -1, v4
    s_cbranch_vccz L_sok
    s_sub_u32 s78, s78, 1
    s_cbranch_scc0 L_spoll
    L_sok:""")
    g.stamp(5)
    A("v_max3_f32 v4, v168, v169, v170")
    for r in range(171, 183, 2): A(f"v_max3_f32 v4, v4, v{r}, v{r+1}")
    A("v_max_f32 v4, v4, v183")
    g.wave_reduce("v_max_f32", ["v4"])
    A(f"""v_readlane_b32 s60, v4, 63
    v_mov_b32 v5, {f32(LOG2E/16)}
    s_nop 0
    v_mul_f32 v4, s60, v5""")
    for r in range(168, 184): A(f"v_fma_f32 v{r}, v{r}, v5, -v4")
    for r in range(168, 184): A(f"v_exp_f32 v{r}, v{r}")
    A("v_pk_add_f32 v[6:7], v[168:169], v[170:171]")
    for r in range(172, 184, 2): A(f"v_pk_add_f32 v[6:7], v[6:7], v[{r}:{r+1}]")
    A("v_add_f32 v4, v6, v7")
    g.wave_reduce("v_add_f32", ["v4"])
    A("""v_rcp_f32 v4, v4
    s_nop 0
    v_readlane_b32 s60, v4, 63
    s_nop 1""")
    for r in range(168, 184, 2): A(f"v_pk_mul_f32 v[{r}:{r+1}], v[{r}:{r+1}], s[60:61] op_sel_hi:[1,0]")
    for i in range(4):
        r = 168 + 4 * i
        A(f"v_cvt_pk_bf16_f32 v{r}, v{r}, v{r+2}\nv_cvt_pk_bf16_f32 v{r+1}, v{r+1}, v{r+3}")
        A(f"ds_write_b32 v3, v{r} offset:{i*1024}\nds_write_b32 v3, v{r+1} offset:{i*1024+128}")
    g.lds_inc(F_P)
    A("s_branch L_kjoin")
    A(f"""L_k23:
    s_cmp_lg_u32 s75, 3
    s_cbranch_scc1 L_kjoin
    ds_read_b32 v5, v255 offset:{F_TAG}
    v_lshrrev_b32 v2, 4, v0
    v_lshlrev_b32 v2, 11, v2
    v_and_b32 v3, 15, v0
    v_lshl_add_u32 v2, v3, 6, v2
    s_lshl_b32 s59, s31, 14
    s_and_b32 s62, s3, 1
    s_lshl_b32 s60, s62, 10
    s_add_u32 s59, s59, s60
    s_add_u32 s59, s59, {WS_Q}
    s_add_u32 s60, s59, 8192
    s_mov_b32 s78, {PB}
    L_cpoll:
    buffer_load_dword v3, v2, s[44:47], s59 offen offset:4 sc1
    buffer_load_dword v4, v2, s[44:47], s60 offen offset:4 sc1
    s_waitcnt vmcnt(0) lgkmcnt(0)
    v_xor_b32 v3, v3, v5
    v_xor_b32 v4, v4, v5
    v_or_b32 v3, v3, v4
    v_cmp_ne_u32 vcc, 0, v3
    s_cbranch_vccz L_cok
    s_sub_u32 s78, s78, 1
    s_cbranch_scc0 L_cpoll
    L_cok:
    v_lshlrev_b32 v2, 4, v0
    s_mul_i32 s59, s62, {128*NT*4}
    s_add_u32 s59, s59, {WS_T}
    s_add_u32 s60, s59, 4096
    s_add_u32 s61, s59, 8192
    s_lshl_b32 s62, s62, 17
    v_add_u32 v3, s62, v2
    s_mov_b32 s78, {PB}
    L_tpoll:""")
    nl = NT // 2
    for i in range(nl): A(f"buffer_load_dwordx4 v[{168+4*i}:{171+4*i}], v2, s[44:47], s{59+i//4} offen offset:{(i%4)*1024} sc1")
    A("s_waitcnt vmcnt(0)")
    g.umax("v4", range(168, 168 + 4 * nl))
    A(f"""v_cmp_eq_u32 vcc, -1, v4
    s_cbranch_vccz L_tok
    s_sub_u32 s78, s78, 1
    s_cbranch_scc0 L_tpoll
    L_tok:""")
    g.lds_wait(F_QK, 4)
    for i in range(nl): A(f"ds_write_b128 v3, v[{168+4*i}:{171+4*i}] offset:{L_TPOS + i*1024}")
    g.stamp(5)
    A(f"""L_kjoin:
    v_lshrrev_b32 v2, 4, v0
    v_and_b32 v3, 1, v0
    v_lshl_add_u32 v2, v2, 1, v3
    v_mul_u32_u24 v2, 48, v2
    v_add_u32 v2, {L_O}, v2
    v_and_b32 v3, 7, v0
    v_lshlrev_b32 v3, 5, v3
    v_and_b32 v4, 8, v0
    v_lshl_add_u32 v3, v4, 1, v3
    s_lshl_b32 s59, s35, 2
    s_add_u32 s59, s59, s32
    s_lshl_b32 s59, s59, 11
    s_lshl_b32 s60, s3, 8
    s_add_u32 s59, s59, s60
    s_add_u32 s59, s59, {WS_P}
    s_waitcnt lgkmcnt(0)""")
    g.stamp(6)
    A(f"""s_barrier
    ds_read_b128 v[136:139], v2
    ds_read_b128 v[140:143], v2 offset:16
    ds_read_b128 v[144:147], v2 offset:384
    ds_read_b128 v[148:151], v2 offset:400
    s_waitcnt lgkmcnt(2)""")
    for t in range(4): A(f"v_cvt_pk_bf16_f32 v{232+t}, v{136+2*t}, v{137+2*t}")
    A("s_waitcnt lgkmcnt(0)")
    for t in range(4): A(f"v_cvt_pk_bf16_f32 v{236+t}, v{144+2*t}, v{145+2*t}")
    def omma(cg, h, j):
        a = 168 + 32 * cg + 4 * j; b = 8 + 32 * (2 * cg + h) + 4 * j
        A(f"v_mfma_f32_16x16x32_bf16 v[{a}:{a+3}], v[{232+4*h}:{235+4*h}], v[{b}:{b+3}], " + ("0" if h == 0 else f"v[{a}:{a+3}]"))
    def oadd(cg, k):
        jj = k % 4; a = 168 + 32 * cg + 4 * k; r = 152 + 4 * cg + jj
        if k < 4: A(f"v_add_f32_dpp v{r}, v{a+1}, v{a} row_ror:8 row_mask:0xf bank_mask:0x3")
        else:     A(f"v_add_f32_dpp v{r}, v{a}, v{a+1} row_ror:8 row_mask:0xf bank_mask:0xc")
    for h in range(2):
        for j in range(8): omma(0, h, j)
    A("s_cmp_eq_u32 s3, 3\ns_cbranch_scc1 L_o3")
    for j in range(8): omma(1, 0, j)
    for j in range(8):
        omma(1, 1, j); oadd(0, j)
    A("s_mov_b64 exec, 0xffff")
    A("buffer_store_dwordx4 v[152:155], v3, s[44:47], s59 offen sc1")
    for k in range(8):
        if k == 4: A("s_nop 0")
        oadd(1, k)
    A("buffer_store_dwordx4 v[156:159], v3, s[44:47], s59 offen offset:1024 sc1")
    A("s_branch L_kdone\nL_o3:\ns_nop 0")
    for k in range(8): oadd(0, k)
    A("s_mov_b64 exec, 0xffff")
    A("buffer_store_dwordx4 v[152:155], v3, s[44:47], s59 offen sc1")
    A("L_kdone:")
    g.stamp(7)
    A("s_branch L_fin")

    A(f"""L_vwave:
    s_sub_u32 s3, s3, 4
    s_cmp_eq_u32 s3, 3
    s_cbranch_scc1 L_ctrl""")
    A(f"""v_lshlrev_b32 v2, 2, v0
    s_mul_i32 s50, s3, 1280
    v_add_u32 v2, s50, v2
    s_getpc_b64 s[52:53]
    L_pc:
    s_sub_u32 s52, s52, L_pc-{KN}
    s_subb_u32 s53, s53, 0
    s_lshl_b32 s51, s3, 13
    v_lshlrev_b32 v3, 7, v0
    v_add_u32 v3, s51, v3
    v_min_u32 v3, L_code_end-{KN}-4, v3
    s_waitcnt lgkmcnt(0)""")
    g.srd(36, 16, 3584); g.srd(40, 18, 3584); g.srd(48, 20, 3584); g.srd(44, 28, WS_SIZE)
    A("v_mov_b32 v60, 0")
    if not opt.get("early"): A("s_barrier")
    for k, srd in enumerate((36, 40, 48)):
        for i in range(5): A(f"buffer_load_dword v{40+5*k+i}, v2, s[{srd}:{srd+3}], 0 offen offset:{i*256}")
    A("global_load_ushort v60, v60, s[22:23]")
    A("global_load_dword v61, v3, s[52:53]")
    if opt.get("early"): A("s_barrier")
    A(f"""s_and_b32 s60, s2, 127
    s_mul_i32 s60, s60, {NT}
    s_add_u32 s60, s60, {ELO*128}
    s_lshr_b32 s61, s2, 7
    s_lshl_b32 s61, s61, 15
    s_add_u32 s60, s60, s61
    s_lshl_b32 s60, s60, 16
    s_add_u32 s61, s60, {(NT//2) << 16}
    v_mov_b32 v38, {f32(K1)}
    v_mov_b32 v39, {f32(K0)}
    v_and_b32 v4, 15, v0""")
    for r in range(104, 112): A(f"v_mov_b32 v{r}, 0")
    A("s_mov_b32 s62, 0\ns_waitcnt vmcnt(1)")
    if opt.get("stamps"): A("s_memtime s[98:99]")
    g.stamp(1)
    for k in range(15):
        A(f"v_lshlrev_b32 v{8+2*k}, 16, v{40+k}\nv_and_b32 v{9+2*k}, 0xffff0000, v{40+k}")
    A("v_lshlrev_b32 v6, 16, v60")
    P = lambda r: f"v[{r}:{r+1}]"
    A(".p2align 3\nL_tloop:")
    CH = [(tt, i) for i in range(5) for tt in range(2)]
    U = lambda tt, i: 62 + 4 * i + 2 * tt
    Z = lambda tt, i: 82 + 4 * i + 2 * tt
    A("v_cmp_eq_u32 vcc, s62, v4")
    for tt, i in CH: A(f"v_pk_fma_f32 {P(U(tt,i))}, {P(8+2*i)}, s[60:61], {P(18+2*i)} op_sel:[0,{tt},0] op_sel_hi:[1,{tt},1]")
    A("v_cndmask_b32 v5, 0, 1.0, vcc")
    for tt, i in CH: A(f"v_pk_mul_f32 {P(Z(tt,i))}, {P(U(tt,i))}, {P(U(tt,i))}")
    for tt, i in CH: A(f"v_pk_fma_f32 {P(Z(tt,i))}, {P(Z(tt,i))}, v[38:39], v[38:39] op_sel:[0,0,1] op_sel_hi:[1,0,1]")
    for tt, i in CH: A(f"v_pk_mul_f32 {P(Z(tt,i))}, {P(Z(tt,i))}, {P(U(tt,i))}")
    for r in range(82, 102): A(f"v_exp_f32 v{r}, v{r}")
    for tt, i in CH: A(f"v_pk_mul_f32 {P(U(tt,i))}, {P(U(tt,i))}, {P(28+2*i)}")
    for tt, i in CH: A(f"v_pk_add_f32 {P(Z(tt,i))}, {P(Z(tt,i))}, 1.0 op_sel_hi:[1,0]")
    for r in range(82, 102): A(f"v_rcp_f32 v{r}, v{r}")
    for tt, i in CH:
        if i == 0: A(f"v_pk_mul_f32 {P(112+2*tt)}, {P(U(tt,i))}, {P(Z(tt,i))}")
        else: A(f"v_pk_fma_f32 {P(112+2*tt)}, {P(U(tt,i))}, {P(Z(tt,i))}, {P(112+2*tt)}")
    A(f"""v_add_f32 v112, v112, v113
    v_add_f32 v114, v114, v115
    s_add_u32 s60, s60, 0x10000
    s_add_u32 s61, s61, 0x10000
    v_mfma_f32_16x16x4_f32 v[104:107], v5, v112, v[104:107]
    v_mfma_f32_16x16x4_f32 v[108:111], v5, v114, v[108:111]
    s_add_u32 s62, s62, 1
    s_cmp_lt_u32 s62, {opt.get('titers', NT//2)}
    s_cbranch_scc1 L_tloop
    v_and_b32 v2, 48, v0
    v_add_u32 v2, {L_TS}, v2
    s_nop 5""")
    if opt.get("stamps"): A("s_memtime s[100:101]")
    g.stamp(2)
    for m in (8, 4, 2, 1):
        for r in range(104, 112): A(f"v_add_f32_dpp v{r}, v{r}, v{r} row_ror:{m} row_mask:0xf bank_mask:0xf")
    A("s_mov_b32 exec_lo, 0x00010001\ns_mov_b32 exec_hi, 0x00000001")
    for r in range(8): A(f"ds_add_f32 v2, v{104+r} offset:{(r%4)*4 + (r//4)*NT*2}")
    A(f"""s_mov_b64 exec, 1
    v_mov_b32 v1, 1
    ds_add_rtn_u32 v1, v255, v1 offset:{F_T}
    s_waitcnt lgkmcnt(0)
    v_readfirstlane_b32 s62, v1
    s_mov_b64 exec, -1
    s_cmp_lg_u32 s62, 2
    s_cbranch_scc1 L_vload""")
    g.lds_wait(F_CLR, 1)
    A(f"""v_lshlrev_b32 v2, 4, v0
    v_add_u32 v3, {L_TS}, v2
    s_mov_b64 exec, {(1 << (NT//4)) - 1}
    ds_read_b128 v[8:11], v3
    s_mul_i32 s62, s2, {NT*4}
    s_add_u32 s62, s62, {WS_T}
    s_waitcnt lgkmcnt(0)
    v_add_f32 v8, v8, v6
    v_add_f32 v9, v9, v6
    v_add_f32 v10, v10, v6
    v_add_f32 v11, v11, v6
    buffer_store_dwordx4 v[8:11], v2, s[44:47], s62 offen sc1
    s_mov_b64 exec, -1
    s_branch L_vload""")
    A(f"""L_ctrl:
    s_setprio 3
    v_lshlrev_b32 v2, 4, v0
    v_add_u32 v3, {L_O}, v2
    v_mov_b32 v8, 0
    v_mov_b32 v9, 0
    v_mov_b32 v10, 0
    v_mov_b32 v11, 0
    ds_write_b128 v3, v[8:11]
    v_mov_b32 v12, -1
    v_mov_b32 v13, -1
    v_mov_b32 v14, -1
    v_mov_b32 v15, -1
    v_lshrrev_b32 v3, 1, v0
    v_lshlrev_b32 v3, 13, v3
    v_and_b32 v4, 1, v0
    v_lshl_add_u32 v3, v4, 4, v3
    s_lshl_b32 s50, s30, 10
    s_lshl_b32 s51, s33, 5
    s_add_u32 s50, s50, s51
    s_lshl_b32 s52, s35, 2
    s_add_u32 s52, s52, s32
    s_lshl_b32 s52, s52, 11
    s_add_u32 s53, s52, {WS_P}
    s_add_u32 s52, s52, {WS_S}
    s_mul_i32 s54, s2, {NT*4}
    s_add_u32 s54, s54, {WS_T}
    s_waitcnt lgkmcnt(0)
    s_load_dword s70, s[28:29], {WS_E}""")
    g.srd(36, 4, 7168); g.srd(40, 10, 448 * 8192); g.srd(44, 28, WS_SIZE)
    if not opt.get("early"): A("s_barrier")
    for i in range(7):
        A(f"s_mov_b32 m0, {L_XS + i*1024}\ns_mov_b32 s57, {i*1024}")
        A("buffer_load_dwordx4 v2, s[36:39], s57 offen lds")
    for i in range(14):
        A(f"s_mov_b32 m0, {L_WQ + i*1024}\ns_add_u32 s57, s50, {i*32*8192}")
        A("buffer_load_dwordx4 v3, s[40:43], s57 offen nt lds" if not opt.get("nowq") else "buffer_load_dwordx4 v2, s[36:39], 0 offen lds")
    if opt.get("early"): A("s_barrier")
    A(f"""buffer_store_dwordx4 v[12:15], v2, s[44:47], s52 offen sc1
    buffer_store_dwordx4 v[12:15], v2, s[44:47], s52 offen offset:1024 sc1
    buffer_store_dwordx4 v[12:15], v2, s[44:47], s53 offen sc1
    buffer_store_dwordx4 v[12:15], v2, s[44:47], s53 offen offset:1024 sc1
    s_mov_b64 exec, {(1 << (NT//4)) - 1}
    buffer_store_dwordx4 v[12:15], v2, s[44:47], s54 offen sc1
    s_mov_b64 exec, -1
    v_and_b32 v4, 15, v0
    v_lshrrev_b32 v5, 4, v0
    v_mul_u32_u24 v6, 896, v4
    v_lshl_add_u32 v6, v5, 4, v6
    v_add_u32 v6, {L_XS}, v6
    v_lshlrev_b32 v7, 3, v4
    v_lshl_add_u32 v7, v5, 8, v7
    v_add_u32 v7, {L_WQ}, v7
    v_mov_b32 v1, 0x3f803f80""")
    for r in range(16, 72): A(f"v_mov_b32 v{r}, v1")
    A("s_waitcnt vmcnt(19)\ns_mov_b32 exec_lo, 0x00ff00ff\ns_mov_b32 exec_hi, 0x00ff00ff")
    for i in range(14): A(f"ds_read_b128 v[{16+4*i}:{19+4*i}], v6 offset:{i*64}")
    A("s_mov_b64 exec, -1\ns_waitcnt lgkmcnt(0)")
    A(f"s_mul_i32 s70, s70, 1664525\ns_add_u32 s70, s70, 1013904223")
    for i in range(14):
        A(f"v_mfma_f32_16x16x32_bf16 v[132:135], v[{16+4*i}:{19+4*i}], v[{16+4*i}:{19+4*i}], " + ("0" if i == 0 else "v[132:135]"))
    A(f"""v_and_b32 v8, 3, v0
    v_add_u32 v9, 32, v4
    v_lshlrev_b32 v9, 2, v9
    v_and_b32 v10, 4, v0
    v_lshl_add_u32 v10, v10, 2, v4
    v_lshlrev_b32 v10, 2, v10
    v_cmp_eq_u32 vcc, 1, v8
    v_cmp_eq_u32 s[60:61], 2, v8
    v_cmp_eq_u32 s[62:63], 3, v8
    v_cndmask_b32 v11, v132, v133, vcc
    v_cndmask_b32 v11, v11, v134, s[60:61]
    v_cndmask_b32 v11, v11, v135, s[62:63]
    ds_bpermute_b32 v9, v9, v132
    ds_bpermute_b32 v10, v10, v11
    s_waitcnt vmcnt(5)""")
    g.stamp(1)
    for i in range(14):
        A(f"ds_read_b64_tr_b16 v[{72+4*i}:{73+4*i}], v7 offset:{i*1024}\nds_read_b64_tr_b16 v[{74+4*i}:{75+4*i}], v7 offset:{i*1024+128}")
        if i == 6: A("s_waitcnt lgkmcnt(8)")
    A(f"""v_mov_b32 v11, {f32(1/448)}
    v_mul_f32 v9, v9, v11
    v_mul_f32 v10, v10, v11
    v_fma_f32 v10, -v9, v9, v10
    v_max_f32 v10, 0, v10
    v_add_f32 v10, {f32(1e-5)}, v10
    v_rsq_f32 v10, v10""")
    for i in range(14):
        A(f"s_waitcnt lgkmcnt({min(14, 26 - 2*i)})")
        A(f"v_mfma_f32_16x16x32_bf16 v[128:131], v[{72+4*i}:{75+4*i}], v[{16+4*i}:{19+4*i}], " + ("0" if i == 0 else "v[128:131]"))
    A(f"""v_lshlrev_b32 v6, 14, v4
    v_lshl_add_u32 v6, v5, 4, v6
    s_lshl_b32 s50, s30, 11
    s_lshl_b32 s51, s33, 6
    s_add_u32 s50, s50, s51
    s_add_u32 s50, s50, {WS_Q}
    v_mov_b32 v13, s70
    v_mov_b32 v15, s70""")
    for r in range(4): A(f"v_mov_b32_dpp v{132+r}, v{128+r} row_newbcast:8 row_mask:0xf bank_mask:0xf")
    for r in range(4): A(f"v_fma_f32 v{128+r}, -v9, v{132+r}, v{128+r}")
    for r in range(4): A(f"v_mul_f32 v{128+r}, v{128+r}, v10")
    A(f"""v_cvt_pk_bf16_f32 v12, v128, v129
    v_cvt_pk_bf16_f32 v14, v130, v131
    s_waitcnt vmcnt(0)
    s_mov_b32 exec_lo, 0x00ff00ff
    s_mov_b32 exec_hi, 0x00ff00ff
    buffer_store_dwordx4 v[12:15], v6, s[44:47], s50 offen sc1
    s_mov_b64 exec, 1
    v_mov_b32 v1, 1
    ds_write2_b32 v255, v1, v13 offset0:{F_CLR//4} offset1:{F_TAG//4}
    s_mov_b64 exec, -1
    s_lshl_b32 s50, s35, 11
    s_add_u32 s50, s50, {WS_Q}
    v_lshlrev_b32 v3, 3, v0
    v_add_u32 v3, {L_Q}, v3
    s_mov_b32 s78, {PB}""")
    g.stamp(2)
    A(f"""L_qpoll:
    buffer_load_dwordx4 v[16:19], v2, s[44:47], s50 offen sc1
    buffer_load_dwordx4 v[20:23], v2, s[44:47], s50 offen offset:1024 sc1
    s_waitcnt vmcnt(0)
    v_xor_b32 v17, v17, v13
    v_xor_b32 v19, v19, v13
    v_xor_b32 v21, v21, v13
    v_xor_b32 v23, v23, v13
    v_or3_b32 v17, v17, v19, v21
    v_or_b32 v17, v17, v23
    v_cmp_ne_u32 vcc, 0, v17
    s_cbranch_vccz L_qok
    s_sub_u32 s78, s78, 1
    s_cbranch_scc0 L_qpoll
    L_qok:
    ds_write2_b32 v3, v16, v18 offset0:0 offset1:1
    ds_write2_b32 v3, v20, v22 offset0:128 offset1:129""")
    g.lds_inc(F_Q)
    A("s_setprio 0")
    A(f"""L_vload:
    v_lshrrev_b32 v1, 3, v0
    v_and_b32 v3, 7, v0
    v_lshlrev_b32 v2, 4, v3
    v_lshl_add_u32 v2, v1, 9, v2
    s_lshl_b32 s50, s3, 12
    s_lshl_b32 s51, s32, 7
    s_add_u32 s50, s50, s51
    s_add_u32 s50, s50, s34
    v_lshlrev_b32 v7, 3, v0
    s_mul_i32 s55, s31, 896""")
    g.srd(36, 8, 0x8000000); g.srd(40, 4, 7168)
    g.stamp(3)
    g.lds_wait(F_KISS, 4)
    A(f"""buffer_load_dwordx2 v[216:217], v7, s[40:43], s55 offen
    buffer_load_dwordx2 v[218:219], v7, s[40:43], s55 offen offset:448""")
    for i in range(32):
        A(f"s_add_u32 s57, s50, {i*16384}")
        if opt.get("vthr"): A(f"s_waitcnt vmcnt({opt['vthr']})")
        A(f"buffer_load_dwordx4 v[{40+4*i}:{43+4*i}], v2, s[36:39], s57 offen nt")
    g.stamp(4)
    A(f"""v_and_b32 v4, 12, v0
    v_lshlrev_b32 v4, 4, v4
    v_and_b32 v5, 48, v0
    v_add_u32 v4, v4, v5
    s_lshl_b32 s51, s3, 10
    s_add_u32 s51, s51, {L_P}
    v_add_u32 v4, s51, v4
    v_mul_u32_u24 v5, 48, v3
    v_bfe_u32 v6, v0, 4, 1
    v_mul_u32_u24 v6, 384, v6
    v_add_u32 v5, v5, v6
    v_add_u32 v5, {L_O}, v5""")
    def vtr(u):
        for t in range(4):
            A(f"s_waitcnt vmcnt({30 - 8*u - 2*t})")
            g.transpose_pair(40 + 32 * u, 8 + 32 * u, t)
    def vmma(u):
        for j in range(8):
            a = 168 + 4 * j; b = 8 + 32 * u + 4 * j
            A(f"v_mfma_f32_16x16x32_bf16 v[{a}:{a+3}], v[{200+4*u}:{203+4*u}], v[{b}:{b+3}], " + ("0" if u == 0 else f"v[{a}:{a+3}]"))
    vtr(0); vtr(1)
    g.lds_wait(F_P, 2)
    for u in range(4): A(f"ds_read_b128 v[{200+4*u}:{203+4*u}], v4 offset:{u*256}")
    A("s_waitcnt lgkmcnt(0)")
    g.stamp(5)
    vmma(0); vmma(1); vtr(2); vmma(2); vtr(3); vmma(3)
    A("s_mov_b32 exec_lo, 0x00ff00ff\ns_mov_b32 exec_hi, 0xff00ff00")
    for j in range(8): A(f"ds_add_f32 v5, v{168+4*j} offset:{j*4}")
    A("s_waitcnt lgkmcnt(0)")
    g.stamp(6)
    A(f"""s_barrier
    s_cmp_lg_u32 s75, 3
    s_cbranch_scc1 L_fin""")
    A(f"""s_mov_b64 exec, -1
    v_lshlrev_b32 v2, 4, v0
    s_lshl_b32 s50, s31, 2
    s_add_u32 s50, s50, s3
    s_lshl_b32 s50, s50, 14
    s_add_u32 s50, s50, {WS_P}
    s_lshl_b32 s51, s3, 11
    s_add_u32 s51, s51, {L_H}
    v_add_u32 v3, s51, v2""")
    for k in range(1, 4):
        A(f"s_add_u32 s51, s3, {k}\ns_and_b32 s51, s51, 3\ns_lshl_b32 s51, s51, 11\ns_add_u32 s51, s51, {L_H}\nv_add_u32 v{3+k}, s51, v2")
    for r in range(8, 16): A(f"v_mov_b32 v{r}, 0")
    A(f"""s_mov_b32 exec_hi, 0x00ffffff
    s_mov_b32 s52, 0xff
    s_mov_b32 s78, {PB}
    L_ppoll:""")
    for p in range(8):
        r = 40 + 8 * p
        A(f"""s_bitcmp0_b32 s52, {p}
        s_cbranch_scc1 L_pi{p}
        s_add_u32 s57, s50, {p*2048}
        buffer_load_dwordx4 v[{r}:{r+3}], v2, s[44:47], s57 offen sc1
        buffer_load_dwordx4 v[{r+4}:{r+7}], v2, s[44:47], s57 offen offset:896 sc1
        L_pi{p}:""")
    A("s_waitcnt vmcnt(0)")
    for p in range(8):
        r = 40 + 8 * p
        A(f"s_bitcmp0_b32 s52, {p}\ns_cbranch_scc1 L_pc{p}")
        g.umax("v1", range(r, r + 8))
        A(f"v_cmp_eq_u32 vcc, -1, v1\ns_cbranch_vccnz L_pc{p}\ns_bitset0_b32 s52, {p}")
        for k in range(0, 8, 2): A(f"v_pk_add_f32 {P(8+k)}, {P(8+k)}, {P(r+k)}")
        A(f"L_pc{p}:")
    A(f"""s_cmp_eq_u32 s52, 0
    s_cbranch_scc1 L_pok
    s_sub_u32 s78, s78, 1
    s_cbranch_scc0 L_ppoll
    L_pok:
    ds_write_b128 v3, v[8:11]
    ds_write_b128 v3, v[12:15] offset:1024
    s_mov_b64 exec, 1
    v_mov_b32 v1, 1
    ds_add_rtn_u32 v1, v255, v1 offset:{F_FIN}
    ds_read_b32 v38, v255 offset:{F_TAG}
    s_mov_b32 exec_lo, -1
    s_mov_b32 exec_hi, 0x00ffffff""")
    for k in range(3):
        A(f"ds_read_b128 v[{104+8*k}:{107+8*k}], v{4+k}\nds_read_b128 v[{108+8*k}:{111+8*k}], v{4+k} offset:1024")
    for k in range(4):
        A(f"v_lshlrev_b32 v{16+2*k}, 16, v{216+k}\nv_and_b32 v{17+2*k}, 0xffff0000, v{216+k}")
    for k in range(0, 8, 2): A(f"v_pk_add_f32 {P(8+k)}, {P(8+k)}, {P(16+k)}")
    A(f"""s_waitcnt lgkmcnt(7)
    v_readfirstlane_b32 s51, v1
    s_cmp_lg_u32 s51, 3
    s_cbranch_scc1 L_fin""")
    g.stamp(7)
    for k in range(3):
        A(f"s_waitcnt lgkmcnt({4-2*k})")
        for q in range(0, 8, 2): A(f"v_pk_add_f32 {P(8+q)}, {P(8+q)}, {P(104+8*k+q)}")
    A(f"""s_mov_b64 exec, -1
    v_pk_add_f32 v[16:17], v[8:9], v[10:11]
    v_pk_mul_f32 v[18:19], v[8:9], v[8:9]
    v_pk_add_f32 v[16:17], v[16:17], v[12:13]
    v_pk_fma_f32 v[18:19], v[10:11], v[10:11], v[18:19]
    v_pk_add_f32 v[16:17], v[16:17], v[14:15]
    v_pk_fma_f32 v[18:19], v[12:13], v[12:13], v[18:19]
    v_add_f32 v16, v16, v17
    v_pk_fma_f32 v[18:19], v[14:15], v[14:15], v[18:19]
    v_add_f32 v18, v18, v19""")
    g.wave_reduce("v_add_f32", ["v16", "v18"])
    A(f"""v_mov_b32 v17, {f32(1/448)}
    v_mul_f32 v16, v16, v17
    v_mul_f32 v18, v18, v17
    v_fma_f32 v18, -v16, v16, v18
    v_max_f32 v18, 0, v18
    v_add_f32 v19, {f32(1e-5)}, v18
    v_rsq_f32 v19, v19
    v_mov_b32 v20, {f32(1e-5)}
    v_mul_f32 v18, v18, v19
    v_fma_f32 v18, v18, v19, v20
    v_rsq_f32 v18, v18
    v_readlane_b32 s60, v16, 63
    v_mul_f32 v18, v18, v19
    s_mov_b32 s62, {(ELO*128) * 0x10001}
    v_readlane_b32 s61, v18, 63
    s_mov_b32 exec_hi, 0x00ffffff
    s_mov_b32 s63, 0x1fffc""")
    for q in range(0, 8, 2): A(f"v_pk_add_f32 {P(16+q)}, {P(8+q)}, s[60:61] op_sel_hi:[1,0] neg_lo:[0,1] neg_hi:[0,1]")
    for q in range(0, 8, 2): A(f"v_pk_mul_f32 {P(16+q)}, {P(16+q)}, s[60:61] op_sel:[0,1] op_sel_hi:[1,1]")
    for q in range(4): A(f"v_cvt_pk_bf16_f32 v{24+q}, v{16+2*q}, v{17+2*q}")
    for q in range(4): A(f"v_pk_sub_u16 v{28+q}, v{24+q}, s62")
    for q in range(8):
        A(f"v_lshlrev_b32_sdwa v{16+q}, 2, v{28+q//2} dst_sel:DWORD dst_unused:UNUSED_PAD src0_sel:DWORD src1_sel:WORD_{q%2}")
        A(f"ds_read_b32 v{40+q}, v{16+q} offset:{L_TPOS}")
    g.srd(40, 24, 7168)
    for q in range(8): A(f"v_and_b32 v{16+q}, s63, v{16+q}")
    g.umax("v1", range(16, 24))
    A(f"""v_cmp_le_u32 vcc, {128*NT*4}, v1
    s_cbranch_vccnz L_fallback
    L_fbret:
    s_waitcnt lgkmcnt(0)""")
    for q in range(0, 8, 2): A(f"v_pk_add_f32 {P(8+q)}, {P(8+q)}, {P(40+q)}")
    for q in range(4): A(f"v_cvt_pk_bf16_f32 v{8+q}, v{8+2*q}, v{9+2*q}")
    A(f"""buffer_store_dwordx2 v[8:9], v7, s[40:43], s55 offen
    buffer_store_dwordx2 v[10:11], v7, s[40:43], s55 offen offset:448
    s_cmp_lg_u32 s31, 0
    s_cbranch_scc1 L_noe
    s_mov_b64 exec, 1
    buffer_store_dword v38, off, s[44:47], 0 offset:{WS_E}
    L_noe:""")
    g.stamp(8)
    A("L_fin:")
    if opt.get("stamps"):
        A("s_mov_b64 exec, 1")
        for k in range(9): A(f"v_mov_b32 v{8+k}, s{80+2*k}")
        A(f"""s_getreg_b32 s50, hwreg(HW_REG_XCC_ID)
        v_mov_b32 v17, s50
        v_mov_b32 v18, s78
        s_sub_u32 s98, s100, s98
        v_mov_b32 v19, s98
        s_lshl_b32 s50, s2, 3
        s_add_u32 s50, s50, s74
        s_lshl_b32 s50, s50, 6
        s_add_u32 s50, s50, {WS_STAMP}
        buffer_store_dwordx4 v[8:11], off, s[44:47], s50
        buffer_store_dwordx4 v[12:15], off, s[44:47], s50 offset:16
        buffer_store_dwordx4 v[16:19], off, s[44:47], s50 offset:32""")
    A("L_end:\ns_endpgm")
    A(f"""L_fallback:
    s_waitcnt lgkmcnt(0)
    s_mov_b64 exec, -1
    v_lshlrev_b32 v2, 2, v0""")
    g.srd(36, 16, 3584); g.srd(48, 18, 3584); g.srd(64, 20, 3584)
    for k, srd in enumerate((36, 48, 64)):
        for i in range(14): A(f"buffer_load_dword v{48+14*k+i}, v2, s[{srd}:{srd+3}], 0 offen offset:{i*256}")
    A("v_mov_b32 v90, 0\nglobal_load_ushort v90, v90, s[22:23]")
    A(f"v_mov_b32 v92, {f32(K1)}\nv_mov_b32 v93, {f32(K0)}\ns_waitcnt vmcnt(0)")
    for k in range(42):
        A(f"v_lshlrev_b32 v{104+2*k}, 16, v{48+k}\nv_and_b32 v{105+2*k}, 0xffff0000, v{48+k}")
    A("v_lshlrev_b32 v90, 16, v90")
    for q in range(8):
        A(f"v_lshlrev_b32 v{48+q}, 16, v{24+q//2}" if q % 2 == 0 else f"v_and_b32 v{48+q}, 0xffff0000, v{24+q//2}")
    A("s_mov_b32 s54, 0")
    A(f"""L_fbq:
    v_cmp_le_u32 vcc, {128*NT*4}, v16
    s_and_b32 s73, vcc_hi, 0x00ffffff
    s_mov_b32 s72, vcc_lo
    L_fbl:
    s_cmp_eq_u64 s[72:73], 0
    s_cbranch_scc1 L_fbn
    s_ff1_i32_b64 s53, s[72:73]
    s_bitset0_b64 s[72:73], s53
    v_readlane_b32 s60, v48, s53
    v_mov_b32 v94, 0
    v_mov_b32 v95, 0""")
    for i in range(14):
        A(f"""v_pk_fma_f32 v[96:97], {P(104+2*i)}, s[60:61], {P(132+2*i)} op_sel_hi:[1,0,1]
        v_pk_mul_f32 v[98:99], v[96:97], v[96:97]
        v_pk_fma_f32 v[98:99], v[98:99], v[92:93], v[92:93] op_sel:[0,0,1] op_sel_hi:[1,0,1]
        v_pk_mul_f32 v[98:99], v[98:99], v[96:97]
        v_exp_f32 v98, v98
        v_exp_f32 v99, v99
        v_pk_mul_f32 v[96:97], v[96:97], {P(160+2*i)}
        v_pk_add_f32 v[98:99], v[98:99], 1.0 op_sel_hi:[1,0]
        v_rcp_f32 v98, v98
        v_rcp_f32 v99, v99
        s_nop 0
        v_pk_fma_f32 v[94:95], v[96:97], v[98:99], v[94:95]""")
    A("v_add_f32 v94, v94, v95")
    g.wave_reduce("v_add_f32", ["v94"])
    A(f"""v_add_f32 v94, v94, v90
    s_mov_b32 m0, s53
    v_readlane_b32 s60, v94, 63
    s_nop 3
    v_writelane_b32 v40, s60, m0
    s_branch L_fbl
    L_fbn:""")
    for base in (16, 48, 40):
        A(f"v_mov_b32 v1, v{base}")
        for q in range(7): A(f"v_mov_b32 v{base+q}, v{base+q+1}")
        A(f"v_mov_b32 v{base+7}, v1")
    A(f"""s_add_u32 s54, s54, 1
    s_cmp_lt_u32 s54, 8
    s_cbranch_scc1 L_fbq
    s_mov_b32 exec_hi, 0x00ffffff
    s_branch L_fbret
    L_code_end:""")
    A(f""".section .rodata,"a"
    .p2align 6
    .amdhsa_kernel {KN}
    .amdhsa_next_free_vgpr 256
    .amdhsa_next_free_sgpr 102
    .amdhsa_accum_offset 256
    .amdhsa_group_segment_fixed_size 0
    .amdhsa_kernarg_size 104
    .amdhsa_user_sgpr_count 2
    .amdhsa_user_sgpr_kernarg_segment_ptr 1
    .amdhsa_system_sgpr_workgroup_id_x 1
    .amdhsa_float_denorm_mode_32 3
    .end_amdhsa_kernel""")
    txt = "\n".join(g.L) + "\n"
    if opt.get("nont"): txt = txt.replace(" nt", "")
    if opt.get("wsoff"):
        txt = txt.replace("s_mov_b32 s44, s28\ns_mov_b32 s45, s29\n", "s_add_u32 s44, s28, %d\ns_addc_u32 s45, s29, 0\n" % opt["wsoff"])
        txt = txt.replace("s_load_dword s70, s[28:29], 0\n", "s_add_u32 s72, s28, %d\ns_addc_u32 s73, s29, 0\ns_load_dword s70, s[72:73], 0\n" % opt["wsoff"])
    if opt.get("nosc1"): txt = txt.replace(" sc1", "")
    if opt.get("sc1nt"): txt = txt.replace(" sc1", " sc1 nt")
    if opt.get("stamps"):
        txt = txt.replace("s_and_b32 s30, s2, 7\n", "s_and_b32 s30, s2, 7\ns_mov_b32 s74, s3\n" + "".join(f"s_mov_b32 s{82+2*k}, 0\n" for k in range(8)), 1)
    return txt

if __name__ == "__main__":
    import hazard
    out = sys.argv[1] if len(sys.argv) > 1 else "k.s"
    opt = eval("dict(%s)" % (sys.argv[2] if len(sys.argv) > 2 else ""))
    t = gen(**opt)
    open(out, "w").write(t)
    for b in hazard.check(t): print("HAZARD", b)
```

```python
import math, struct, sys
KN = "sequential_preLN__sliding_block_cached__mixer_token_mlp__decode_kernel"

def f32(x): return "0x%08x" % struct.unpack("<I", struct.pack("<f", x))[0]

WS_E, WS_Q, WS_S, WS_P, WS_T, WS_STAMP, WS_SIZE = 0, 0x10000, 0x40000, 0xC0000, 0x140000, 0x200000, 0x400000
KM, KX, M = 26624, 106496, 139264
L_WQ, L_XS, L_P, L_Q, L_O, L_TS, L_FL = M, 153600, 153600, 160768, 161792, 162560, 162688
L_H, L_TPOS, L_TNEG, L_FB = 16384, 0, 131072, 32768
F_KISS, F_Q, F_P, F_T, F_QK, F_FIN, F_CLR, F_TAG = [4 * i for i in range(8)]
NT = 24
ELO = 132 - NT
LOG2E = math.log2(math.e)
K0 = -2.0 * math.sqrt(2.0 / math.pi) * LOG2E
K1 = K0 * 0.044715

class G:
    def __init__(s, **opt):
        s.L = []; s.o = opt; s.n = 0
    def A(s, x):
        for l in x.strip("\n").split("\n"): s.L.append(l.strip())
    def lab(s, p):
        s.n += 1; return f"L_{p}{s.n}"
    def stamp(s, k):
        pr = s.o.get("probe")
        if s.o.get("stamps") or (pr and k == pr["k"] and k):
            s.A(f"s_memrealtime s[{80+2*k}:{81+2*k}]\ns_waitcnt lgkmcnt(0)")
        elif pr and k == 0:
            s.A(f"s_memrealtime s[80:81]")
    def srd(s, d, lo, size):
        s.A(f"s_mov_b32 s{d}, s{lo}\ns_mov_b32 s{d+1}, s{lo+1}\ns_mov_b32 s{d+2}, {size}\ns_mov_b32 s{d+3}, 0x20000")
    def lds_inc(s, flag, tmp=("v1",)):
        s.A(f"s_mov_b64 exec, 1\nv_mov_b32 {tmp[0]}, 1\nds_add_u32 v255, {tmp[0]} offset:{flag}\ns_mov_b64 exec, -1")
    def lds_wait(s, flag, val, tmp="v1"):
        l, d = s.lab("spin"), s.lab("spind")
        s.A(f"""s_mov_b32 s78, 0x40000
        {l}:
        ds_read_b32 {tmp}, v255 offset:{flag}
        s_waitcnt lgkmcnt(0)
        v_readfirstlane_b32 s79, {tmp}
        s_cmp_ge_u32 s79, {val}
        s_cbranch_scc1 {d}
        s_sleep 1
        s_sub_u32 s78, s78, 1
        s_cbranch_scc0 {l}
        {d}:""")
    def umax(s, dst, regs):
        r = list(regs)
        s.A(f"v_max3_u32 {dst}, v{r[0]}, v{r[1]}, v{r[2]}"); r = r[3:]
        while len(r) >= 2:
            s.A(f"v_max3_u32 {dst}, {dst}, v{r[0]}, v{r[1]}"); r = r[2:]
        if r: s.A(f"v_max_u32 {dst}, {dst}, v{r[0]}")
    def wave_reduce(s, op, vs):
        pad = {1: "s_nop 1", 2: "s_nop 0"}.get(len(vs))
        s.A("s_nop 1")
        for i, m in enumerate(("row_ror:8 row_mask:0xf", "row_ror:4 row_mask:0xf", "row_ror:2 row_mask:0xf", "row_ror:1 row_mask:0xf",
                  "row_bcast:15 row_mask:0xa", "row_bcast:31 row_mask:0xc")):
            for v in vs: s.A(f"{op}_dpp {v}, {v}, {v} {m} bank_mask:0xf")
            if pad: s.A(pad)
    def transpose_pair(s, src, dst, t):
        for q in range(4):
            a, b = src + 8 * t + q, src + 8 * t + 4 + q
            s.A(f"v_perm_b32 v{dst + 8*q + t}, v{b}, v{a}, s76")
            s.A(f"v_perm_b32 v{dst + 8*q + 4 + t}, v{b}, v{a}, s77")

def gen(**opt):
    g = G(**opt); A = g.A
    PB = opt.get("pollbound", 0x4000)
    A(f"; @launch grid=(256,1,1) block=(512,1,1) lds=163840")
    A('.amdgcn_target "amdgcn-amd-amdhsa--gfx950"')
    A(f".text\n.globl {KN}\n.p2align 8\n.type {KN},@function\n{KN}:")
    g.stamp(0)
    A(f"""s_cmp_ge_u32 s2, 256
    s_cbranch_scc1 L_end
    s_load_dwordx16 s[4:19], s[0:1], 0
    s_load_dwordx8 s[20:27], s[0:1], 64
    s_load_dwordx2 s[28:29], s[0:1], 96
    v_lshrrev_b32 v1, 6, v0
    v_and_b32 v0, 63, v0
    v_readfirstlane_b32 s3, v1
    s_and_b32 s30, s2, 7
    s_lshr_b32 s33, s2, 3
    s_lshr_b32 s31, s33, 2
    s_and_b32 s32, s33, 3
    s_lshl_b32 s35, s31, 3
    s_add_u32 s35, s35, s30
    s_lshl_b32 s34, s35, 21
    s_add_u32 s34, s34, 0x180000
    s_mov_b32 s76, 0x05040100
    s_mov_b32 s77, 0x07060302
    v_mov_b32 v255, {L_FL}
    s_cmp_eq_u32 s30, s31
    s_cselect_b32 s75, s32, 0
    s_cmp_ge_u32 s3, 4
    s_cbranch_scc1 L_vwave""")
    A(f"""s_setprio 2
    v_lshrrev_b32 v1, 5, v0
    v_and_b32 v2, 31, v0
    v_xor_b32 v2, v2, v1
    v_lshlrev_b32 v2, 4, v2
    v_lshl_add_u32 v240, v1, 9, v2""")
    for j in range(1, 8): A(f"v_xor_b32 v{240+j}, {32*j}, v240")
    A(f"""v_and_b32 v2, 7, v0
    v_lshlrev_b32 v2, 4, v2
    v_lshrrev_b32 v1, 3, v0
    v_mul_u32_u24 v1, {8*896}, v1
    v_add_u32 v248, v1, v2
    s_cmp_eq_u32 s3, 3
    s_cselect_b32 s50, 0x40000000, 512
    v_add_u32 v249, s50, v248
    s_lshl_b32 s50, s3, 2
    s_add_u32 s50, s50, s32
    s_lshl_b32 s50, s50, 10
    s_add_u32 s50, s50, s34
    s_lshl_b32 s51, s32, 3
    s_add_u32 s51, s51, s3
    s_lshl_b32 s51, s51, 12
    s_add_u32 s51, s51, s34
    s_add_u32 s51, s51, {832*512}
    s_mul_i32 s52, s3, {KM}
    s_lshl_b32 s53, s3, 13
    s_add_u32 s53, s53, {KX}
    s_lshl_b32 s54, s30, 3
    s_add_u32 s54, s54, s32
    s_mul_i32 s54, s54, {64*896}
    s_lshl_b32 s55, s3, 7
    s_add_u32 s54, s54, s55
    s_waitcnt lgkmcnt(0)""")
    g.srd(36, 6, 0x8000000); g.srd(40, 12, 4096 * 896); g.srd(44, 28, WS_SIZE)
    wl = [(cg, h, i) for cg in range(2) for h in range(2) for i in range(8)]
    def wo_load(n):
        cg, h, i = wl[n]
        if i % 4 == 0: A(f"s_add_u32 s56, s54, {h*256*896 + i*896}")
        r = 40 + n * 4
        A(f"buffer_load_dwordx4 v[{r}:{r+3}], v{248+cg}, s[40:43], s56 offen offset:{(i%4)*896} nt")
    nwo = 0
    for n in range(26):
        if n == opt.get("b0at", 3):
            A("s_barrier")
            A("s_cmp_eq_u32 s32, 3\ns_cbranch_scc1 L_nox")
            for x in range(8):
                A(f"s_add_u32 m0, s53, {x*1024}\ns_add_u32 s57, s51, {(32*(x&1) + 2*(x>>1))*512}")
                if opt.get("kthr"): A(f"s_waitcnt vmcnt({opt['kthr']})")
                A(f"buffer_load_dwordx4 v{240+x}, s[36:39], s57 offen nt lds")
            A("L_nox:")
        A(f"s_add_u32 m0, s52, {n*1024}\ns_add_u32 s57, s50, {n*16384}")
        if opt.get("kthr"): A(f"s_waitcnt vmcnt({opt['kthr']})")
        A(f"buffer_load_dwordx4 v{240+n%8}, s[36:39], s57 offen nt lds")
        while nwo < 32 * (n + 1) // 26: wo_load(nwo); nwo += 1
    g.lds_inc(F_KISS)
    g.stamp(1)
    A(f"""v_and_b32 v1, 15, v0
    v_lshrrev_b32 v2, 4, v0
    v_xor_b32 v3, v1, v2
    v_lshlrev_b32 v3, 4, v3
    v_lshl_add_u32 v3, v1, 9, v3
    v_add_u32 v250, s52, v3
    v_xor_b32 v251, 64, v250
    v_xor_b32 v252, 128, v250
    v_xor_b32 v253, 192, v250
    v_and_b32 v3, 1, v0
    v_lshlrev_b32 v254, 9, v3
    v_lshl_add_u32 v254, v2, 4, v254
    v_add_u32 v254, {L_Q}, v254
    v_lshlrev_b32 v3, 12, v3
    v_lshl_add_u32 v248, v2, 4, v3
    v_lshl_add_u32 v249, v2, 6, v3
    s_lshl_b32 s58, s35, 13
    s_add_u32 s58, s58, {WS_S}
    s_lshl_b32 s59, s3, 10
    s_add_u32 s59, s59, s58
    s_lshl_b32 s60, s32, 4
    s_add_u32 s60, s60, s59
    s_lshl_b32 s61, s32, 6
    s_add_u32 s59, s59, s61
    s_sub_u32 s61, s53, s52""")
    g.lds_wait(F_Q, 1)
    for i in range(8): A(f"ds_read_b128 v[{8+4*i}:{11+4*i}], v254 offset:{i*64}")
    g.stamp(2)
    A("s_waitcnt vmcnt(0)")
    g.stamp(3)
    DREG = [232, 236, 240, 244, 4]
    def kread(t, buf):
        for i in range(8):
            A(f"ds_read_b128 v[{buf+4*i}:{buf+4*i+3}], v{250+i%4} offset:{(t%4)*8192 + (i//4)*256}")
    def kmma(t, buf, more):
        d = DREG[t]
        for i in range(8):
            A(f"s_waitcnt lgkmcnt({7 - i + more})")
            A(f"v_mfma_f32_16x16x32_bf16 v[{d}:{d+3}], v[{buf+4*i}:{buf+4*i+3}], v[{8+4*i}:{11+4*i}], " + ("0" if i == 0 else f"v[{d}:{d+3}]"))
    bufs = [168, 200]
    A("s_waitcnt lgkmcnt(0)")
    kread(0, bufs[0])
    for t in range(5):
        if t < 4:
            if t == 3:
                for i in range(4): A(f"v_add_u32 v{250+i}, s61, v{250+i}")
            kread(t + 1, bufs[(t + 1) % 2])
        kmma(t, bufs[t % 2], 8 if t < 4 else 0)
    A("s_mov_b32 exec_lo, 0x00030003\ns_mov_b32 exec_hi, 0x00030003")
    for t in range(3):
        A(f"buffer_store_dwordx4 v[{DREG[t]}:{DREG[t]+3}], v248, s[44:47], s59 offen offset:{t*256} sc1")
    A(f"""s_cmp_eq_u32 s32, 3
    s_cbranch_scc1 L_nox2
    s_nop 1
    buffer_store_dwordx4 v[4:7], v249, s[44:47], s60 offen offset:784 sc1
    L_nox2:
    s_mov_b64 exec, 3
    buffer_store_dwordx4 v[244:247], v248, s[44:47], s59 offen offset:768 sc1""")
    g.lds_inc(F_QK)
    g.stamp(4)
    for u in range(4):
        for t in range(4): g.transpose_pair(40 + 32 * u, 8 + 32 * u, t)
    A("""s_cmp_ge_u32 s3, 2
    s_cbranch_scc1 L_k23""")
    A(f"""v_lshlrev_b32 v2, 4, v0
    s_lshl_b32 s59, s3, 12
    s_add_u32 s59, s59, s58
    v_lshrrev_b32 v3, 4, v0
    v_lshlrev_b32 v3, 8, v3
    v_and_b32 v4, 15, v0
    v_lshl_add_u32 v3, v4, 2, v3
    s_lshl_b32 s60, s3, 6
    s_add_u32 s60, s60, {L_P}
    v_add_u32 v3, s60, v3
    s_mov_b32 s78, {PB}
    L_spoll:""")
    for i in range(4): A(f"buffer_load_dwordx4 v[{168+4*i}:{171+4*i}], v2, s[44:47], s59 offen offset:{i*1024} sc1")
    A("s_waitcnt vmcnt(0)")
    g.umax("v4", range(168, 184))
    A(f"""v_cmp_eq_u32 vcc, -1, v4
    s_cbranch_vccz L_sok
    s_sub_u32 s78, s78, 1
    s_cbranch_scc0 L_spoll
    L_sok:""")
    g.stamp(5)
    A("v_max3_f32 v4, v168, v169, v170")
    for r in range(171, 183, 2): A(f"v_max3_f32 v4, v4, v{r}, v{r+1}")
    A("v_max_f32 v4, v4, v183")
    g.wave_reduce("v_max_f32", ["v4"])
    A(f"""v_readlane_b32 s60, v4, 63
    v_mov_b32 v5, {f32(LOG2E/16)}
    s_nop 0
    v_mul_f32 v4, s60, v5""")
    for r in range(168, 184): A(f"v_fma_f32 v{r}, v{r}, v5, -v4")
    for r in range(168, 184): A(f"v_exp_f32 v{r}, v{r}")
    A("v_pk_add_f32 v[6:7], v[168:169], v[170:171]")
    for r in range(172, 184, 2): A(f"v_pk_add_f32 v[6:7], v[6:7], v[{r}:{r+1}]")
    A("v_add_f32 v4, v6, v7")
    g.wave_reduce("v_add_f32", ["v4"])
    A("""v_rcp_f32 v4, v4
    s_nop 0
    v_readlane_b32 s60, v4, 63
    s_nop 1""")
    for r in range(168, 184, 2): A(f"v_pk_mul_f32 v[{r}:{r+1}], v[{r}:{r+1}], s[60:61] op_sel_hi:[1,0]")
    for i in range(4):
        r = 168 + 4 * i
        A(f"v_cvt_pk_bf16_f32 v{r}, v{r}, v{r+2}\nv_cvt_pk_bf16_f32 v{r+1}, v{r+1}, v{r+3}")
        A(f"ds_write_b32 v3, v{r} offset:{i*1024}\nds_write_b32 v3, v{r+1} offset:{i*1024+128}")
    g.lds_inc(F_P)
    A("s_branch L_kjoin")
    A(f"""L_k23:
    s_cmp_lg_u32 s75, 3
    s_cbranch_scc1 L_kjoin
    ds_read_b32 v5, v255 offset:{F_TAG}
    v_lshrrev_b32 v2, 4, v0
    v_lshlrev_b32 v2, 11, v2
    v_and_b32 v3, 15, v0
    v_lshl_add_u32 v2, v3, 6, v2
    s_lshl_b32 s59, s31, 14
    s_and_b32 s62, s3, 1
    s_lshl_b32 s60, s62, 10
    s_add_u32 s59, s59, s60
    s_add_u32 s59, s59, {WS_Q}
    s_add_u32 s60, s59, 8192
    s_mov_b32 s78, {PB}
    L_cpoll:
    buffer_load_dword v3, v2, s[44:47], s59 offen offset:4 sc1
    buffer_load_dword v4, v2, s[44:47], s60 offen offset:4 sc1
    s_waitcnt vmcnt(0) lgkmcnt(0)
    v_xor_b32 v3, v3, v5
    v_xor_b32 v4, v4, v5
    v_or_b32 v3, v3, v4
    v_cmp_ne_u32 vcc, 0, v3
    s_cbranch_vccz L_cok
    s_sub_u32 s78, s78, 1
    s_cbranch_scc0 L_cpoll
    L_cok:
    v_lshlrev_b32 v2, 4, v0
    s_mul_i32 s59, s62, {128*NT*4}
    s_add_u32 s59, s59, {WS_T}
    s_add_u32 s60, s59, 4096
    s_add_u32 s61, s59, 8192
    s_lshl_b32 s62, s62, 17
    v_add_u32 v3, s62, v2
    s_mov_b32 s78, {PB}
    L_tpoll:""")
    nl = NT // 2
    for i in range(nl): A(f"buffer_load_dwordx4 v[{168+4*i}:{171+4*i}], v2, s[44:47], s{59+i//4} offen offset:{(i%4)*1024} sc1")
    A("s_waitcnt vmcnt(0)")
    g.umax("v4", range(168, 168 + 4 * nl))
    A(f"""v_cmp_eq_u32 vcc, -1, v4
    s_cbranch_vccz L_tok
    s_sub_u32 s78, s78, 1
    s_cbranch_scc0 L_tpoll
    L_tok:""")
    g.lds_wait(F_QK, 4)
    for i in range(nl): A(f"ds_write_b128 v3, v[{168+4*i}:{171+4*i}] offset:{L_TPOS + i*1024}")
    g.stamp(5)
    A(f"""L_kjoin:
    v_lshrrev_b32 v2, 4, v0
    v_and_b32 v3, 1, v0
    v_lshl_add_u32 v2, v2, 1, v3
    v_mul_u32_u24 v2, 48, v2
    v_add_u32 v2, {L_O}, v2
    v_and_b32 v3, 7, v0
    v_lshlrev_b32 v3, 5, v3
    v_and_b32 v4, 8, v0
    v_lshl_add_u32 v3, v4, 1, v3
    s_lshl_b32 s59, s35, 2
    s_add_u32 s59, s59, s32
    s_lshl_b32 s59, s59, 11
    s_lshl_b32 s60, s3, 8
    s_add_u32 s59, s59, s60
    s_add_u32 s59, s59, {WS_P}
    s_waitcnt lgkmcnt(0)""")
    g.stamp(6)
    A(f"""s_barrier
    ds_read_b128 v[136:139], v2
    ds_read_b128 v[140:143], v2 offset:16
    ds_read_b128 v[144:147], v2 offset:384
    ds_read_b128 v[148:151], v2 offset:400
    s_waitcnt lgkmcnt(2)""")
    for t in range(4): A(f"v_cvt_pk_bf16_f32 v{232+t}, v{136+2*t}, v{137+2*t}")
    A("s_waitcnt lgkmcnt(0)")
    for t in range(4): A(f"v_cvt_pk_bf16_f32 v{236+t}, v{144+2*t}, v{145+2*t}")
    def omma(cg, h, j):
        a = 168 + 32 * cg + 4 * j; b = 8 + 32 * (2 * cg + h) + 4 * j
        A(f"v_mfma_f32_16x16x32_bf16 v[{a}:{a+3}], v[{232+4*h}:{235+4*h}], v[{b}:{b+3}], " + ("0" if h == 0 else f"v[{a}:{a+3}]"))
    def oadd(cg, k):
        jj = k % 4; a = 168 + 32 * cg + 4 * k; r = 152 + 4 * cg + jj
        if k < 4: A(f"v_add_f32_dpp v{r}, v{a+1}, v{a} row_ror:8 row_mask:0xf bank_mask:0x3")
        else:     A(f"v_add_f32_dpp v{r}, v{a}, v{a+1} row_ror:8 row_mask:0xf bank_mask:0xc")
    for h in range(2):
        for j in range(8): omma(0, h, j)
    A("s_cmp_eq_u32 s3, 3\ns_cbranch_scc1 L_o3")
    for j in range(8): omma(1, 0, j)
    for j in range(8):
        omma(1, 1, j); oadd(0, j)
    A("s_mov_b64 exec, 0xffff")
    A("buffer_store_dwordx4 v[152:155], v3, s[44:47], s59 offen sc1")
    for k in range(8):
        if k == 4: A("s_nop 0")
        oadd(1, k)
    A("buffer_store_dwordx4 v[156:159], v3, s[44:47], s59 offen offset:1024 sc1")
    A("s_branch L_kdone\nL_o3:\ns_nop 0")
    for k in range(8): oadd(0, k)
    A("s_mov_b64 exec, 0xffff")
    A("buffer_store_dwordx4 v[152:155], v3, s[44:47], s59 offen sc1")
    A("L_kdone:")
    g.stamp(7)
    A("s_branch L_fin")

    A(f"""L_vwave:
    s_sub_u32 s3, s3, 4
    s_cmp_eq_u32 s3, 3
    s_cbranch_scc1 L_ctrl""")
    A(f"""v_lshlrev_b32 v2, 2, v0
    s_mul_i32 s50, s3, 1280
    v_add_u32 v2, s50, v2
    s_getpc_b64 s[52:53]
    L_pc:
    s_sub_u32 s52, s52, L_pc-{KN}
    s_subb_u32 s53, s53, 0
    s_lshl_b32 s51, s3, 13
    v_lshlrev_b32 v3, 7, v0
    v_add_u32 v3, s51, v3
    v_min_u32 v3, L_code_end-{KN}-4, v3
    s_waitcnt lgkmcnt(0)""")
    g.srd(36, 16, 3584); g.srd(40, 18, 3584); g.srd(48, 20, 3584); g.srd(44, 28, WS_SIZE)
    A("v_mov_b32 v60, 0")
    if not opt.get("early"): A("s_barrier")
    for k, srd in enumerate((36, 40, 48)):
        for i in range(5): A(f"buffer_load_dword v{40+5*k+i}, v2, s[{srd}:{srd+3}], 0 offen offset:{i*256}")
    A("global_load_ushort v60, v60, s[22:23]")
    A("global_load_dword v61, v3, s[52:53]")
    if opt.get("early"): A("s_barrier")
    A(f"""s_and_b32 s60, s2, 127
    s_mul_i32 s60, s60, {NT}
    s_add_u32 s60, s60, {ELO*128}
    s_lshr_b32 s61, s2, 7
    s_lshl_b32 s61, s61, 15
    s_add_u32 s60, s60, s61
    s_lshl_b32 s60, s60, 16
    s_add_u32 s61, s60, {(NT//2) << 16}
    v_mov_b32 v38, {f32(K1)}
    v_mov_b32 v39, {f32(K0)}
    v_and_b32 v4, 15, v0""")
    for r in range(104, 112): A(f"v_mov_b32 v{r}, 0")
    A("s_mov_b32 s62, 0\ns_waitcnt vmcnt(1)")
    if opt.get("stamps"): A("s_memtime s[98:99]")
    g.stamp(1)
    for k in range(15):
        A(f"v_lshlrev_b32 v{8+2*k}, 16, v{40+k}\nv_and_b32 v{9+2*k}, 0xffff0000, v{40+k}")
    A("v_lshlrev_b32 v6, 16, v60")
    P = lambda r: f"v[{r}:{r+1}]"
    A(".p2align 3\nL_tloop:")
    CH = [(tt, i) for i in range(5) for tt in range(2)]
    U = lambda tt, i: 62 + 4 * i + 2 * tt
    Z = lambda tt, i: 82 + 4 * i + 2 * tt
    A("v_cmp_eq_u32 vcc, s62, v4")
    for tt, i in CH: A(f"v_pk_fma_f32 {P(U(tt,i))}, {P(8+2*i)}, s[60:61], {P(18+2*i)} op_sel:[0,{tt},0] op_sel_hi:[1,{tt},1]")
    A("v_cndmask_b32 v5, 0, 1.0, vcc")
    for tt, i in CH: A(f"v_pk_mul_f32 {P(Z(tt,i))}, {P(U(tt,i))}, {P(U(tt,i))}")
    for tt, i in CH: A(f"v_pk_fma_f32 {P(Z(tt,i))}, {P(Z(tt,i))}, v[38:39], v[38:39] op_sel:[0,0,1] op_sel_hi:[1,0,1]")
    for tt, i in CH: A(f"v_pk_mul_f32 {P(Z(tt,i))}, {P(Z(tt,i))}, {P(U(tt,i))}")
    for r in range(82, 102): A(f"v_exp_f32 v{r}, v{r}")
    for tt, i in CH: A(f"v_pk_mul_f32 {P(U(tt,i))}, {P(U(tt,i))}, {P(28+2*i)}")
    for tt, i in CH: A(f"v_pk_add_f32 {P(Z(tt,i))}, {P(Z(tt,i))}, 1.0 op_sel_hi:[1,0]")
    for r in range(82, 102): A(f"v_rcp_f32 v{r}, v{r}")
    for tt, i in CH:
        if i == 0: A(f"v_pk_mul_f32 {P(112+2*tt)}, {P(U(tt,i))}, {P(Z(tt,i))}")
        else: A(f"v_pk_fma_f32 {P(112+2*tt)}, {P(U(tt,i))}, {P(Z(tt,i))}, {P(112+2*tt)}")
    A(f"""v_add_f32 v112, v112, v113
    v_add_f32 v114, v114, v115
    s_add_u32 s60, s60, 0x10000
    s_add_u32 s61, s61, 0x10000
    v_mfma_f32_16x16x4_f32 v[104:107], v5, v112, v[104:107]
    v_mfma_f32_16x16x4_f32 v[108:111], v5, v114, v[108:111]
    s_add_u32 s62, s62, 1
    s_cmp_lt_u32 s62, {opt.get('titers', NT//2)}
    s_cbranch_scc1 L_tloop
    v_and_b32 v2, 48, v0
    v_add_u32 v2, {L_TS}, v2
    s_nop 5""")
    if opt.get("stamps"): A("s_memtime s[100:101]")
    g.stamp(2)
    for m in (8, 4, 2, 1):
        for r in range(104, 112): A(f"v_add_f32_dpp v{r}, v{r}, v{r} row_ror:{m} row_mask:0xf bank_mask:0xf")
    A("s_mov_b32 exec_lo, 0x00010001\ns_mov_b32 exec_hi, 0x00000001")
    for r in range(8): A(f"ds_add_f32 v2, v{104+r} offset:{(r%4)*4 + (r//4)*NT*2}")
    A(f"""s_mov_b64 exec, 1
    v_mov_b32 v1, 1
    ds_add_rtn_u32 v1, v255, v1 offset:{F_T}
    s_waitcnt lgkmcnt(0)
    v_readfirstlane_b32 s62, v1
    s_mov_b64 exec, -1
    s_cmp_lg_u32 s62, 2
    s_cbranch_scc1 L_vload""")
    g.lds_wait(F_CLR, 1)
    A(f"""v_lshlrev_b32 v2, 4, v0
    v_add_u32 v3, {L_TS}, v2
    s_mov_b64 exec, {(1 << (NT//4)) - 1}
    ds_read_b128 v[8:11], v3
    s_mul_i32 s62, s2, {NT*4}
    s_add_u32 s62, s62, {WS_T}
    s_waitcnt lgkmcnt(0)
    v_add_f32 v8, v8, v6
    v_add_f32 v9, v9, v6
    v_add_f32 v10, v10, v6
    v_add_f32 v11, v11, v6
    buffer_store_dwordx4 v[8:11], v2, s[44:47], s62 offen sc1
    s_mov_b64 exec, -1
    s_branch L_vload""")
    A(f"""L_ctrl:
    s_setprio 3
    v_lshlrev_b32 v2, 4, v0
    v_add_u32 v3, {L_O}, v2
    v_mov_b32 v8, 0
    v_mov_b32 v9, 0
    v_mov_b32 v10, 0
    v_mov_b32 v11, 0
    ds_write_b128 v3, v[8:11]
    v_mov_b32 v12, -1
    v_mov_b32 v13, -1
    v_mov_b32 v14, -1
    v_mov_b32 v15, -1
    v_lshrrev_b32 v3, 1, v0
    v_lshlrev_b32 v3, 13, v3
    v_and_b32 v4, 1, v0
    v_lshl_add_u32 v3, v4, 4, v3
    s_lshl_b32 s50, s30, 10
    s_lshl_b32 s51, s33, 5
    s_add_u32 s50, s50, s51
    s_lshl_b32 s52, s35, 2
    s_add_u32 s52, s52, s32
    s_lshl_b32 s52, s52, 11
    s_add_u32 s53, s52, {WS_P}
    s_add_u32 s52, s52, {WS_S}
    s_mul_i32 s54, s2, {NT*4}
    s_add_u32 s54, s54, {WS_T}
    s_waitcnt lgkmcnt(0)
    s_load_dword s70, s[28:29], {WS_E}""")
    g.srd(36, 4, 7168); g.srd(40, 10, 448 * 8192); g.srd(44, 28, WS_SIZE)
    if not opt.get("early"): A("s_barrier")
    for i in range(7):
        A(f"s_mov_b32 m0, {L_XS + i*1024}\ns_mov_b32 s57, {i*1024}")
        A("buffer_load_dwordx4 v2, s[36:39], s57 offen lds")
    for i in range(14):
        A(f"s_mov_b32 m0, {L_WQ + i*1024}\ns_add_u32 s57, s50, {i*32*8192}")
        A("buffer_load_dwordx4 v3, s[40:43], s57 offen nt lds" if not opt.get("nowq") else "buffer_load_dwordx4 v2, s[36:39], 0 offen lds")
    if opt.get("early"): A("s_barrier")
    A(f"""buffer_store_dwordx4 v[12:15], v2, s[44:47], s52 offen sc1
    buffer_store_dwordx4 v[12:15], v2, s[44:47], s52 offen offset:1024 sc1
    buffer_store_dwordx4 v[12:15], v2, s[44:47], s53 offen sc1
    buffer_store_dwordx4 v[12:15], v2, s[44:47], s53 offen offset:1024 sc1
    s_mov_b64 exec, {(1 << (NT//4)) - 1}
    buffer_store_dwordx4 v[12:15], v2, s[44:47], s54 offen sc1
    s_mov_b64 exec, -1
    v_and_b32 v4, 15, v0
    v_lshrrev_b32 v5, 4, v0
    v_mul_u32_u24 v6, 896, v4
    v_lshl_add_u32 v6, v5, 4, v6
    v_add_u32 v6, {L_XS}, v6
    v_lshlrev_b32 v7, 3, v4
    v_lshl_add_u32 v7, v5, 8, v7
    v_add_u32 v7, {L_WQ}, v7
    v_mov_b32 v1, 0x3f803f80""")
    for r in range(16, 72): A(f"v_mov_b32 v{r}, v1")
    A("s_waitcnt vmcnt(19)\ns_mov_b32 exec_lo, 0x00ff00ff\ns_mov_b32 exec_hi, 0x00ff00ff")
    for i in range(14): A(f"ds_read_b128 v[{16+4*i}:{19+4*i}], v6 offset:{i*64}")
    A("s_mov_b64 exec, -1\ns_waitcnt lgkmcnt(0)")
    A(f"s_mul_i32 s70, s70, 1664525\ns_add_u32 s70, s70, 1013904223")
    for i in range(14):
        A(f"v_mfma_f32_16x16x32_bf16 v[132:135], v[{16+4*i}:{19+4*i}], v[{16+4*i}:{19+4*i}], " + ("0" if i == 0 else "v[132:135]"))
    A(f"""v_and_b32 v8, 3, v0
    v_add_u32 v9, 32, v4
    v_lshlrev_b32 v9, 2, v9
    v_and_b32 v10, 4, v0
    v_lshl_add_u32 v10, v10, 2, v4
    v_lshlrev_b32 v10, 2, v10
    v_cmp_eq_u32 vcc, 1, v8
    v_cmp_eq_u32 s[60:61], 2, v8
    v_cmp_eq_u32 s[62:63], 3, v8
    v_cndmask_b32 v11, v132, v133, vcc
    v_cndmask_b32 v11, v11, v134, s[60:61]
    v_cndmask_b32 v11, v11, v135, s[62:63]
    ds_bpermute_b32 v9, v9, v132
    ds_bpermute_b32 v10, v10, v11
    s_waitcnt vmcnt(5)""")
    g.stamp(1)
    for i in range(14):
        A(f"ds_read_b64_tr_b16 v[{72+4*i}:{73+4*i}], v7 offset:{i*1024}\nds_read_b64_tr_b16 v[{74+4*i}:{75+4*i}], v7 offset:{i*1024+128}")
        if i == 6: A("s_waitcnt lgkmcnt(8)")
    A(f"""v_mov_b32 v11, {f32(1/448)}
    v_mul_f32 v9, v9, v11
    v_mul_f32 v10, v10, v11
    v_fma_f32 v10, -v9, v9, v10
    v_max_f32 v10, 0, v10
    v_add_f32 v10, {f32(1e-5)}, v10
    v_rsq_f32 v10, v10""")
    for i in range(14):
        A(f"s_waitcnt lgkmcnt({min(14, 26 - 2*i)})")
        A(f"v_mfma_f32_16x16x32_bf16 v[128:131], v[{72+4*i}:{75+4*i}], v[{16+4*i}:{19+4*i}], " + ("0" if i == 0 else "v[128:131]"))
    A(f"""v_lshlrev_b32 v6, 14, v4
    v_lshl_add_u32 v6, v5, 4, v6
    s_lshl_b32 s50, s30, 11
    s_lshl_b32 s51, s33, 6
    s_add_u32 s50, s50, s51
    s_add_u32 s50, s50, {WS_Q}
    v_mov_b32 v13, s70
    v_mov_b32 v15, s70""")
    for r in range(4): A(f"v_mov_b32_dpp v{132+r}, v{128+r} row_newbcast:8 row_mask:0xf bank_mask:0xf")
    for r in range(4): A(f"v_fma_f32 v{128+r}, -v9, v{132+r}, v{128+r}")
    for r in range(4): A(f"v_mul_f32 v{128+r}, v{128+r}, v10")
    A(f"""v_cvt_pk_bf16_f32 v12, v128, v129
    v_cvt_pk_bf16_f32 v14, v130, v131
    s_waitcnt vmcnt(0)
    s_mov_b32 exec_lo, 0x00ff00ff
    s_mov_b32 exec_hi, 0x00ff00ff
    buffer_store_dwordx4 v[12:15], v6, s[44:47], s50 offen sc1
    s_mov_b64 exec, 1
    v_mov_b32 v1, 1
    ds_write2_b32 v255, v1, v13 offset0:{F_CLR//4} offset1:{F_TAG//4}
    s_mov_b64 exec, -1
    s_lshl_b32 s50, s35, 11
    s_add_u32 s50, s50, {WS_Q}
    v_lshlrev_b32 v3, 3, v0
    v_add_u32 v3, {L_Q}, v3
    s_mov_b32 s78, {PB}""")
    g.stamp(2)
    A(f"""L_qpoll:
    buffer_load_dwordx4 v[16:19], v2, s[44:47], s50 offen sc1
    buffer_load_dwordx4 v[20:23], v2, s[44:47], s50 offen offset:1024 sc1
    s_waitcnt vmcnt(0)
    v_xor_b32 v17, v17, v13
    v_xor_b32 v19, v19, v13
    v_xor_b32 v21, v21, v13
    v_xor_b32 v23, v23, v13
    v_or3_b32 v17, v17, v19, v21
    v_or_b32 v17, v17, v23
    v_cmp_ne_u32 vcc, 0, v17
    s_cbranch_vccz L_qok
    s_sub_u32 s78, s78, 1
    s_cbranch_scc0 L_qpoll
    L_qok:
    ds_write2_b32 v3, v16, v18 offset0:0 offset1:1
    ds_write2_b32 v3, v20, v22 offset0:128 offset1:129""")
    g.lds_inc(F_Q)
    A("s_setprio 0")
    A(f"""L_vload:
    v_lshrrev_b32 v1, 3, v0
    v_and_b32 v3, 7, v0
    v_lshlrev_b32 v2, 4, v3
    v_lshl_add_u32 v2, v1, 9, v2
    s_lshl_b32 s50, s3, 12
    s_lshl_b32 s51, s32, 7
    s_add_u32 s50, s50, s51
    s_add_u32 s50, s50, s34
    v_lshlrev_b32 v7, 3, v0
    s_mul_i32 s55, s31, 896""")
    g.srd(36, 8, 0x8000000); g.srd(40, 4, 7168)
    g.stamp(3)
    g.lds_wait(F_KISS, 4)
    A(f"""buffer_load_dwordx2 v[216:217], v7, s[40:43], s55 offen
    buffer_load_dwordx2 v[218:219], v7, s[40:43], s55 offen offset:448""")
    for i in range(32):
        A(f"s_add_u32 s57, s50, {i*16384}")
        if opt.get("vthr"): A(f"s_waitcnt vmcnt({opt['vthr']})")
        A(f"buffer_load_dwordx4 v[{40+4*i}:{43+4*i}], v2, s[36:39], s57 offen nt")
    g.stamp(4)
    A(f"""v_and_b32 v4, 12, v0
    v_lshlrev_b32 v4, 4, v4
    v_and_b32 v5, 48, v0
    v_add_u32 v4, v4, v5
    s_lshl_b32 s51, s3, 10
    s_add_u32 s51, s51, {L_P}
    v_add_u32 v4, s51, v4
    v_mul_u32_u24 v5, 48, v3
    v_bfe_u32 v6, v0, 4, 1
    v_mul_u32_u24 v6, 384, v6
    v_add_u32 v5, v5, v6
    v_add_u32 v5, {L_O}, v5""")
    def vtr(u):
        for t in range(4):
            A(f"s_waitcnt vmcnt({30 - 8*u - 2*t})")
            g.transpose_pair(40 + 32 * u, 8 + 32 * u, t)
    def vmma(u):
        for j in range(8):
            a = 168 + 4 * j; b = 8 + 32 * u + 4 * j
            A(f"v_mfma_f32_16x16x32_bf16 v[{a}:{a+3}], v[{200+4*u}:{203+4*u}], v[{b}:{b+3}], " + ("0" if u == 0 else f"v[{a}:{a+3}]"))
    vtr(0); vtr(1)
    g.lds_wait(F_P, 2)
    for u in range(4): A(f"ds_read_b128 v[{200+4*u}:{203+4*u}], v4 offset:{u*256}")
    A("s_waitcnt lgkmcnt(0)")
    g.stamp(5)
    vmma(0); vmma(1); vtr(2); vmma(2); vtr(3); vmma(3)
    A("s_mov_b32 exec_lo, 0x00ff00ff\ns_mov_b32 exec_hi, 0xff00ff00")
    for j in range(8): A(f"ds_add_f32 v5, v{168+4*j} offset:{j*4}")
    A("s_waitcnt lgkmcnt(0)")
    g.stamp(6)
    A(f"""s_barrier
    s_cmp_lg_u32 s75, 3
    s_cbranch_scc1 L_fin""")
    A(f"""s_mov_b64 exec, -1
    v_lshlrev_b32 v2, 4, v0
    s_lshl_b32 s50, s31, 2
    s_add_u32 s50, s50, s3
    s_lshl_b32 s50, s50, 14
    s_add_u32 s50, s50, {WS_P}
    s_lshl_b32 s51, s3, 11
    s_add_u32 s51, s51, {L_H}
    v_add_u32 v3, s51, v2""")
    for k in range(1, 4):
        A(f"s_add_u32 s51, s3, {k}\ns_and_b32 s51, s51, 3\ns_lshl_b32 s51, s51, 11\ns_add_u32 s51, s51, {L_H}\nv_add_u32 v{3+k}, s51, v2")
    for r in range(8, 16): A(f"v_mov_b32 v{r}, 0")
    A(f"""s_mov_b32 exec_hi, 0x00ffffff
    s_mov_b32 s52, 0xff
    s_mov_b32 s78, {PB}
    L_ppoll:""")
    for p in range(8):
        r = 40 + 8 * p
        A(f"""s_bitcmp0_b32 s52, {p}
        s_cbranch_scc1 L_pi{p}
        s_add_u32 s57, s50, {p*2048}
        buffer_load_dwordx4 v[{r}:{r+3}], v2, s[44:47], s57 offen sc1
        buffer_load_dwordx4 v[{r+4}:{r+7}], v2, s[44:47], s57 offen offset:896 sc1
        L_pi{p}:""")
    A("s_waitcnt vmcnt(0)")
    for p in range(8):
        r = 40 + 8 * p
        A(f"s_bitcmp0_b32 s52, {p}\ns_cbranch_scc1 L_pc{p}")
        g.umax("v1", range(r, r + 8))
        A(f"v_cmp_eq_u32 vcc, -1, v1\ns_cbranch_vccnz L_pc{p}\ns_bitset0_b32 s52, {p}")
        for k in range(0, 8, 2): A(f"v_pk_add_f32 {P(8+k)}, {P(8+k)}, {P(r+k)}")
        A(f"L_pc{p}:")
    A(f"""s_cmp_eq_u32 s52, 0
    s_cbranch_scc1 L_pok
    s_sub_u32 s78, s78, 1
    s_cbranch_scc0 L_ppoll
    L_pok:
    ds_write_b128 v3, v[8:11]
    ds_write_b128 v3, v[12:15] offset:1024
    s_mov_b64 exec, 1
    v_mov_b32 v1, 1
    ds_add_rtn_u32 v1, v255, v1 offset:{F_FIN}
    ds_read_b32 v38, v255 offset:{F_TAG}
    s_mov_b32 exec_lo, -1
    s_mov_b32 exec_hi, 0x00ffffff""")
    for k in range(3):
        A(f"ds_read_b128 v[{104+8*k}:{107+8*k}], v{4+k}\nds_read_b128 v[{108+8*k}:{111+8*k}], v{4+k} offset:1024")
    for k in range(4):
        A(f"v_lshlrev_b32 v{16+2*k}, 16, v{216+k}\nv_and_b32 v{17+2*k}, 0xffff0000, v{216+k}")
    for k in range(0, 8, 2): A(f"v_pk_add_f32 {P(8+k)}, {P(8+k)}, {P(16+k)}")
    A(f"""s_waitcnt lgkmcnt(7)
    v_readfirstlane_b32 s51, v1
    s_cmp_lg_u32 s51, 3
    s_cbranch_scc1 L_fin""")
    g.stamp(7)
    for k in range(3):
        A(f"s_waitcnt lgkmcnt({4-2*k})")
        for q in range(0, 8, 2): A(f"v_pk_add_f32 {P(8+q)}, {P(8+q)}, {P(104+8*k+q)}")
    A(f"""s_mov_b64 exec, -1
    v_pk_add_f32 v[16:17], v[8:9], v[10:11]
    v_pk_mul_f32 v[18:19], v[8:9], v[8:9]
    v_pk_add_f32 v[16:17], v[16:17], v[12:13]
    v_pk_fma_f32 v[18:19], v[10:11], v[10:11], v[18:19]
    v_pk_add_f32 v[16:17], v[16:17], v[14:15]
    v_pk_fma_f32 v[18:19], v[12:13], v[12:13], v[18:19]
    v_add_f32 v16, v16, v17
    v_pk_fma_f32 v[18:19], v[14:15], v[14:15], v[18:19]
    v_add_f32 v18, v18, v19""")
    g.wave_reduce("v_add_f32", ["v16", "v18"])
    A(f"""v_mov_b32 v17, {f32(1/448)}
    v_mul_f32 v16, v16, v17
    v_mul_f32 v18, v18, v17
    v_fma_f32 v18, -v16, v16, v18
    v_max_f32 v18, 0, v18
    v_add_f32 v19, {f32(1e-5)}, v18
    v_rsq_f32 v19, v19
    v_mov_b32 v20, {f32(1e-5)}
    v_mul_f32 v18, v18, v19
    v_fma_f32 v18, v18, v19, v20
    v_rsq_f32 v18, v18
    v_readlane_b32 s60, v16, 63
    v_mul_f32 v18, v18, v19
    s_mov_b32 s62, {(ELO*128) * 0x10001}
    v_readlane_b32 s61, v18, 63
    s_mov_b32 exec_hi, 0x00ffffff
    s_mov_b32 s63, 0x1fffc""")
    for q in range(0, 8, 2): A(f"v_pk_add_f32 {P(16+q)}, {P(8+q)}, s[60:61] op_sel_hi:[1,0] neg_lo:[0,1] neg_hi:[0,1]")
    for q in range(0, 8, 2): A(f"v_pk_mul_f32 {P(16+q)}, {P(16+q)}, s[60:61] op_sel:[0,1] op_sel_hi:[1,1]")
    for q in range(4): A(f"v_cvt_pk_bf16_f32 v{24+q}, v{16+2*q}, v{17+2*q}")
    for q in range(4): A(f"v_pk_sub_u16 v{28+q}, v{24+q}, s62")
    for q in range(8):
        A(f"v_lshlrev_b32_sdwa v{16+q}, 2, v{28+q//2} dst_sel:DWORD dst_unused:UNUSED_PAD src0_sel:DWORD src1_sel:WORD_{q%2}")
        A(f"ds_read_b32 v{40+q}, v{16+q} offset:{L_TPOS}")
    g.srd(40, 24, 7168)
    for q in range(8): A(f"v_and_b32 v{16+q}, s63, v{16+q}")
    g.umax("v1", range(16, 24))
    A(f"""v_cmp_le_u32 vcc, {128*NT*4}, v1
    s_cbranch_vccnz L_fallback
    L_fbret:
    s_waitcnt lgkmcnt(0)""")
    for q in range(0, 8, 2): A(f"v_pk_add_f32 {P(8+q)}, {P(8+q)}, {P(40+q)}")
    for q in range(4): A(f"v_cvt_pk_bf16_f32 v{8+q}, v{8+2*q}, v{9+2*q}")
    A(f"""buffer_store_dwordx2 v[8:9], v7, s[40:43], s55 offen
    buffer_store_dwordx2 v[10:11], v7, s[40:43], s55 offen offset:448
    s_cmp_lg_u32 s31, 0
    s_cbranch_scc1 L_noe
    s_mov_b64 exec, 1
    buffer_store_dword v38, off, s[44:47], 0 offset:{WS_E}
    L_noe:""")
    g.stamp(8)
    A("L_fin:")
    if opt.get("stamps"):
        A("s_mov_b64 exec, 1")
        for k in range(9): A(f"v_mov_b32 v{8+k}, s{80+2*k}")
        A(f"""s_getreg_b32 s50, hwreg(HW_REG_XCC_ID)
        v_mov_b32 v17, s50
        v_mov_b32 v18, s78
        s_sub_u32 s98, s100, s98
        v_mov_b32 v19, s98
        s_lshl_b32 s50, s2, 3
        s_add_u32 s50, s50, s74
        s_lshl_b32 s50, s50, 6
        s_add_u32 s50, s50, {WS_STAMP}
        buffer_store_dwordx4 v[8:11], off, s[44:47], s50
        buffer_store_dwordx4 v[12:15], off, s[44:47], s50 offset:16
        buffer_store_dwordx4 v[16:19], off, s[44:47], s50 offset:32""")
    pr = opt.get("probe")
    if pr:
        k = pr["k"]
        A(f"s_cmp_eq_u32 s{80+2*k}, 0\ns_cbranch_scc1 L_end")
        if pr.get("wave") is not None: A(f"s_cmp_lg_u32 s74, {pr['wave']}\ns_cbranch_scc1 L_end")
        if pr.get("wg") is not None: A(f"s_cmp_lg_u32 s2, {pr['wg']}\ns_cbranch_scc1 L_end")
        A(f"""s_sub_u32 s50, s{80+2*k}, s80
        s_mul_i32 s50, s50, {pr['K']}
        s_add_u32 s50, s50, {pr.get('base', 4000)}
        s_min_u32 s50, s50, 100000
        L_probe:
        s_memrealtime s[52:53]
        s_waitcnt lgkmcnt(0)
        s_sub_u32 s52, s52, s80
        s_cmp_lt_u32 s52, s50
        s_cbranch_scc1 L_probe""")
    A("L_end:\ns_endpgm")
    A(f"""L_fallback:
    s_waitcnt lgkmcnt(0)
    s_mov_b64 exec, -1
    v_lshlrev_b32 v2, 2, v0""")
    g.srd(36, 16, 3584); g.srd(48, 18, 3584); g.srd(64, 20, 3584)
    for k, srd in enumerate((36, 48, 64)):
        for i in range(14): A(f"buffer_load_dword v{48+14*k+i}, v2, s[{srd}:{srd+3}], 0 offen offset:{i*256}")
    A("v_mov_b32 v90, 0\nglobal_load_ushort v90, v90, s[22:23]")
    A(f"v_mov_b32 v92, {f32(K1)}\nv_mov_b32 v93, {f32(K0)}\ns_waitcnt vmcnt(0)")
    for k in range(42):
        A(f"v_lshlrev_b32 v{104+2*k}, 16, v{48+k}\nv_and_b32 v{105+2*k}, 0xffff0000, v{48+k}")
    A("v_lshlrev_b32 v90, 16, v90")
    for q in range(8):
        A(f"v_lshlrev_b32 v{48+q}, 16, v{24+q//2}" if q % 2 == 0 else f"v_and_b32 v{48+q}, 0xffff0000, v{24+q//2}")
    A("s_mov_b32 s54, 0")
    A(f"""L_fbq:
    v_cmp_le_u32 vcc, {128*NT*4}, v16
    s_and_b32 s73, vcc_hi, 0x00ffffff
    s_mov_b32 s72, vcc_lo
    L_fbl:
    s_cmp_eq_u64 s[72:73], 0
    s_cbranch_scc1 L_fbn
    s_ff1_i32_b64 s53, s[72:73]
    s_bitset0_b64 s[72:73], s53
    v_readlane_b32 s60, v48, s53
    v_mov_b32 v94, 0
    v_mov_b32 v95, 0""")
    for i in range(14):
        A(f"""v_pk_fma_f32 v[96:97], {P(104+2*i)}, s[60:61], {P(132+2*i)} op_sel_hi:[1,0,1]
        v_pk_mul_f32 v[98:99], v[96:97], v[96:97]
        v_pk_fma_f32 v[98:99], v[98:99], v[92:93], v[92:93] op_sel:[0,0,1] op_sel_hi:[1,0,1]
        v_pk_mul_f32 v[98:99], v[98:99], v[96:97]
        v_exp_f32 v98, v98
        v_exp_f32 v99, v99
        v_pk_mul_f32 v[96:97], v[96:97], {P(160+2*i)}
        v_pk_add_f32 v[98:99], v[98:99], 1.0 op_sel_hi:[1,0]
        v_rcp_f32 v98, v98
        v_rcp_f32 v99, v99
        s_nop 0
        v_pk_fma_f32 v[94:95], v[96:97], v[98:99], v[94:95]""")
    A("v_add_f32 v94, v94, v95")
    g.wave_reduce("v_add_f32", ["v94"])
    A(f"""v_add_f32 v94, v94, v90
    s_mov_b32 m0, s53
    v_readlane_b32 s60, v94, 63
    s_nop 3
    v_writelane_b32 v40, s60, m0
    s_branch L_fbl
    L_fbn:""")
    for base in (16, 48, 40):
        A(f"v_mov_b32 v1, v{base}")
        for q in range(7): A(f"v_mov_b32 v{base+q}, v{base+q+1}")
        A(f"v_mov_b32 v{base+7}, v1")
    A(f"""s_add_u32 s54, s54, 1
    s_cmp_lt_u32 s54, 8
    s_cbranch_scc1 L_fbq
    s_mov_b32 exec_hi, 0x00ffffff
    s_branch L_fbret
    L_code_end:""")
    A(f""".section .rodata,"a"
    .p2align 6
    .amdhsa_kernel {KN}
    .amdhsa_next_free_vgpr 256
    .amdhsa_next_free_sgpr 102
    .amdhsa_accum_offset 256
    .amdhsa_group_segment_fixed_size 0
    .amdhsa_kernarg_size 104
    .amdhsa_user_sgpr_count 2
    .amdhsa_user_sgpr_kernarg_segment_ptr 1
    .amdhsa_system_sgpr_workgroup_id_x 1
    .amdhsa_float_denorm_mode_32 3
    .end_amdhsa_kernel""")
    txt = "\n".join(g.L) + "\n"
    if opt.get("nont"): txt = txt.replace(" nt", "")
    if opt.get("wsoff"):
        txt = txt.replace("s_mov_b32 s44, s28\ns_mov_b32 s45, s29\n", "s_add_u32 s44, s28, %d\ns_addc_u32 s45, s29, 0\n" % opt["wsoff"])
        txt = txt.replace("s_load_dword s70, s[28:29], 0\n", "s_add_u32 s72, s28, %d\ns_addc_u32 s73, s29, 0\ns_load_dword s70, s[72:73], 0\n" % opt["wsoff"])
    if opt.get("nosc1"): txt = txt.replace(" sc1", "")
    if opt.get("sc1nt"): txt = txt.replace(" sc1", " sc1 nt")
    if opt.get("stamps") or opt.get("probe"):
        txt = txt.replace("s_and_b32 s30, s2, 7\n", "s_and_b32 s30, s2, 7\ns_mov_b32 s74, s3\n" + "".join(f"s_mov_b32 s{82+2*k}, 0\n" for k in range(8)), 1)
    return txt

if __name__ == "__main__":
    import hazard
    out = sys.argv[1] if len(sys.argv) > 1 else "k.s"
    opt = eval("dict(%s)" % (sys.argv[2] if len(sys.argv) > 2 else ""))
    t = gen(**opt)
    open(out, "w").write(t)
    for b in hazard.check(t): print("HAZARD", b)
```

```python
import re
def regs(tok):
    tok = tok.strip()
    tok = tok.replace("-|", "").replace("|", "").lstrip("-")
    m = re.fullmatch(r"abs\((.*)\)", tok)
    if m: tok = m.group(1)
    m = re.fullmatch(r"([vsa])\[(\d+):(\d+)\]", tok)
    if m: return {(m.group(1), i) for i in range(int(m.group(2)), int(m.group(3)) + 1)}
    m = re.fullmatch(r"([vsa])(\d+)", tok)
    if m: return {(m.group(1), int(m.group(2)))}
    if tok in ("vcc", "vcc_lo", "vcc_hi"): return {("s", "vcc")}
    if tok == "m0": return {("s", "m0")}
    if tok.startswith("exec"): return {("s", "exec")}
    return set()
TRANS = ("v_exp_", "v_log_", "v_rcp_", "v_rsq_", "v_sqrt_", "v_sin_", "v_cos_")
def parse(line):
    line = line.split(";")[0].strip()
    if not line or line.endswith(":") or line.startswith("."): return None
    p = line.split(None, 1)
    op = p[0]; ops = []
    if len(p) > 1:
        ops = [x.strip() for x in re.split(r",(?![^\[]*\])", p[1])]
        ops = [x.split()[0] if x else x for x in ops]
    d = dict(op=op, line=line, w=set(), r=set())
    R = [regs(x) for x in ops]
    isv = op.startswith("v_")
    d["valu"] = isv and not op.startswith(("v_mfma", "v_smfmac"))
    d["mfma"] = op.startswith(("v_mfma", "v_smfmac"))
    d["dpp"] = "_dpp" in op
    d["trans"] = op.startswith(TRANS)
    d["vmem"] = op.startswith(("buffer_", "global_"))
    d["ds"] = op.startswith("ds_")
    if isv:
        d["w"] = set(R[0]); d["r"] = set().union(*R[1:]) if len(R) > 1 else set()
        if op.startswith(("v_fmac", "v_dot2c", "v_smfmac", "v_writelane")) or (d["dpp"]): d["r"] |= R[0]
        if op.startswith("v_permlane"): d["w"] |= R[1]; d["r"] |= R[0]
        if "_co_" in op: d["w"] |= R[1]
        if d["mfma"]:
            d["A"], d["B"], d["C"] = R[1], R[2], (R[0] if op.startswith("v_smfmac") else R[3])
            d["passes"] = 8 if ("32x32x16" in op or "16x16x4_f32" in op) else (16 if "32x32x2_f32" in op else 4)
            d["sgemm"] = op.endswith("_f32") and op.count("f32") == 2
    elif d["vmem"]:
        if "load" in op and " lds" not in line: d["w"] = set(R[0]); d["r"] = set().union(*R[1:])
        else: d["r"] = set().union(*R)
        if " lds" in line: d["r"] |= {("s", "m0")}
        d["widestore"] = "store" in op and ("x4" in op or "x3" in op)
        if d["widestore"]: d["data"] = R[0] if op.startswith("buffer") else R[1]
    elif d["ds"]:
        if "read" in op or "rtn" in op or "permute" in op or "swizzle" in op: d["w"] = set(R[0]); d["r"] = set().union(*R[1:])
        else: d["r"] = set().union(*R)
    elif op.startswith("s_"):
        if op.startswith(("s_cmp", "s_bitcmp", "s_cbranch", "s_waitcnt", "s_nop", "s_barrier", "s_sleep", "s_setprio", "s_branch", "s_endpgm")):
            d["r"] = set().union(*R) if R else set()
        else:
            d["w"] = set(R[0]) if R else set(); d["r"] = set().union(*R[1:]) if len(R) > 1 else set()
    d["states"] = (int(ops[0], 0) + 1) if op == "s_nop" else 1
    return d
def autofix(text, verbose=False):
    while True:
        b = check(text, first=True)
        if not b: return text
        ln, deficit, msg = b
        if verbose: print("autonop", deficit, msg)
        L = text.split("\n")
        L.insert(ln, f"s_nop {deficit - 1}")
        text = "\n".join(L)
def check(text, first=False):
    ins = []
    for n, l in enumerate(text.split("\n")):
        x = parse(l)
        if x: x["ln"] = n; ins.append(x)
    bad = []
    for i, c in enumerate(ins):
        if first and bad: return max(bad, key=lambda t: t[1])
        dist = 0
        for j in range(i - 1, max(-1, i - 24), -1):
            p = ins[j]
            if p["op"] in ("s_branch", "s_endpgm"): break
            need = 0; why = ""
            V = lambda s: {x for x in s if x[0] in "va"}
            S = lambda s: {x for x in s if x[0] == "s"}
            if p["valu"]:
                if c["mfma"] and V(p["w"]) & c["r"]: need, why = 2, "valu->mfma"
                if c["dpp"] and V(p["w"]) & c["r"]: need, why = 2, "valu->dpp"
                if c["op"].startswith("v_permlane") and V(p["w"]) & c["r"]: need, why = 2, "valu->permlane"
                if c["op"].startswith(("v_readlane", "v_readfirstlane")) and V(p["w"]) & c["r"]: need, why = max(need, 1), "valu->readlane"
                if p["trans"] and c["valu"] and not c["trans"] and V(p["w"]) & c["r"]: need, why = max(need, 1), "trans->valu"
                if S(p["w"]) & c["r"]:
                    if c["vmem"]: need, why = 5, "valu sgpr->vmem"
                    elif c["op"].startswith(("v_readlane", "v_writelane")): need, why = 4, "valu sgpr->lanesel"
                    elif c["valu"]: need, why = max(need, 2), "valu sgpr->valu"
                if p["op"].startswith("v_dot") and (c["valu"] or c["mfma"]) and V(p["w"]) & (c["r"] | c["w"]) and c["op"] != p["op"]: need, why = 3, "dot->other"
            if p["mfma"]:
                ps = p["passes"]; sg = p["sgemm"]
                big = ({4: 6, 8: 10, 16: 18} if sg else {4: 8, 8: 12, 16: 20})[ps]
                if c["mfma"]:
                    if p["w"] & (c["A"] | c["B"]): need, why = big, "mfma->mfma AB"
                    elif p["w"] & c["C"] and not (p["w"] == c["C"] and p["op"] == c["op"]): need, why = {4: 6, 8: 10, 16: 18}[ps], "mfma->mfma C overlap"
                elif (c["valu"] or c["vmem"] or c["ds"]) and p["w"] & (c["r"] | c["w"]): need, why = big, "mfma D->use"
                if c["valu"] and not sg and p["C"] & c["w"]: need, why = max(need, {4: 3, 8: 7, 16: 15}[ps]), why or "mfma C WAR"
            if p.get("widestore") and (p["data"] & c["w"]): need, why = max(need, 2), "store WAR"
            if p["op"].startswith("s_") and ("s", "m0") in p["w"] and c["vmem"] and ("s", "m0") in c["r"]: need, why = 1, "m0->dma"
            if need > dist:
                msg = f"{why}: need {need} have {dist}: [{p['line']}] -> [{c['line']}]"
                bad.append((c["ln"], need - dist, msg) if first else msg)
            dist += p["states"]
            if dist >= 20: break
    if first: return max(bad, key=lambda t: t[1]) if bad else None
    return bad
if __name__ == "__main__":
    import sys
    for b in check(open(sys.argv[1]).read()): print(b)
```

```python
import math, struct, sys
KN = "sequential_preLN__sliding_block_cached__mixer_token_mlp__decode_kernel"

def f32(x): return "0x%08x" % struct.unpack("<I", struct.pack("<f", x))[0]

WS_E, WS_HI, WS_Q, WS_S, WS_P, WS_T, WS_STAMP, WS_SIZE = 0, 0x2000, 0x180000, 0x40000, 0xC0000, 0x140000, 0x200000, 0x400000
NM = 22
KM, KX = NM * 1024, 4 * NM * 1024
L_WQ, L_XS = KX, KX + 57344
L_P, L_Q, L_TS, L_FL, L_O = 155648, 159744, 160768, 160896, 161024
OP, HP = 288, 2560
L_H, L_TPOS, L_TNEG = 16384, 0, 131072
F_KISS, F_Q, F_P, F_T, F_QK, F_FIN, F_WQ, F_TOK, F_TAG, F_MODE = [4 * i for i in range(10)]
CONS_S = 1
NT = 24
ELO = 132 - NT
LOG2E = math.log2(math.e)
K0 = -2.0 * math.sqrt(2.0 / math.pi) * LOG2E
K1 = K0 * 0.044715

class G:
    def __init__(s, **opt):
        s.L = []; s.o = opt; s.n = 0; s.role = 'k'
    def A(s, x):
        for l in x.strip("\n").split("\n"): s.L.append(l.strip())
    def lab(s, p):
        s.n += 1; return f"L_{p}{s.n}"
    def stamp(s, k, nowait=False):
        pr = s.o.get("probe")
        ss = s.o.get("stamps")
        if ss and ss is not True:
            if k == 0: s.A("s_memrealtime s[80:81]")
            elif (s.role + str(k)) in ss: s.A(f"s_memrealtime s[{80+2*k}:{81+2*k}]" + ("" if nowait else "\ns_waitcnt lgkmcnt(0)"))
        elif s.role == "w": pass
        elif ss or (pr and k == pr["k"] and k):
            s.A(f"s_memrealtime s[{80+2*k}:{81+2*k}]\ns_waitcnt lgkmcnt(0)")
        elif pr and k == 0:
            s.A(f"s_memrealtime s[80:81]")
    def srd(s, d, lo, size):
        s.A(f"s_mov_b32 s{d}, s{lo}\ns_mov_b32 s{d+1}, s{lo+1}\ns_mov_b32 s{d+2}, {size}\ns_mov_b32 s{d+3}, 0x20000")
    def lds_inc(s, flag, tmp=("v1",)):
        s.A(f"s_mov_b64 exec, 1\nv_mov_b32 {tmp[0]}, 1\nds_add_u32 v255, {tmp[0]} offset:{flag}\ns_mov_b64 exec, -1")
    def lds_wait(s, flag, val, tmp="v1"):
        l, d = s.lab("spin"), s.lab("spind")
        s.A(f"""s_mov_b32 s78, 0x40000
        {l}:
        ds_read_b32 {tmp}, v255 offset:{flag}
        s_waitcnt lgkmcnt(0)
        v_readfirstlane_b32 s79, {tmp}
        s_cmp_ge_u32 s79, {val}
        s_cbranch_scc1 {d}
        s_sleep 1
        s_sub_u32 s78, s78, 1
        s_cbranch_scc0 {l}
        {d}:""")
    def umax(s, dst, regs):
        r = list(regs)
        s.A(f"v_max3_u32 {dst}, v{r[0]}, v{r[1]}, v{r[2]}"); r = r[3:]
        while len(r) >= 2:
            s.A(f"v_max3_u32 {dst}, {dst}, v{r[0]}, v{r[1]}"); r = r[2:]
        if r: s.A(f"v_max_u32 {dst}, {dst}, v{r[0]}")
    def tagchk(s, dst, regs, tag, t=("v1", "v254")):
        r = list(regs); first = True
        while r:
            if first:
                s.A(f"v_bitop3_b32 {dst}, v{r[0]}, v{r[1]}, {tag} bitop3:0x7e"); r = r[2:]; first = False
            elif len(r) >= 4:
                s.A(f"v_bitop3_b32 {t[0]}, v{r[0]}, v{r[1]}, {tag} bitop3:0x7e")
                s.A(f"v_bitop3_b32 {t[1]}, v{r[2]}, v{r[3]}, {tag} bitop3:0x7e")
                s.A(f"v_or3_b32 {dst}, {dst}, {t[0]}, {t[1]}"); r = r[4:]
            else:
                s.A(f"v_bitop3_b32 {dst}, {dst}, v{r[0]}, {tag} bitop3:0xf6"); r = r[1:]
        s.A(f"v_cmp_ne_u32_sdwa vcc, {dst}, 0 src0_sel:BYTE_0 src1_sel:DWORD")
    def wave_reduce(s, op, vs):
        pad = {1: "s_nop 1", 2: "s_nop 0"}.get(len(vs))
        s.A("s_nop 1")
        for i, m in enumerate(("row_ror:8 row_mask:0xf", "row_ror:4 row_mask:0xf", "row_ror:2 row_mask:0xf", "row_ror:1 row_mask:0xf",
                  "row_bcast:15 row_mask:0xa", "row_bcast:31 row_mask:0xc")):
            for v in vs: s.A(f"{op}_dpp {v}, {v}, {v} {m} bank_mask:0xf")
            if pad: s.A(pad)
    def transpose_pair(s, src, dst, t):
        for q in range(4):
            a, b = src + 8 * t + q, src + 8 * t + 4 + q
            s.A(f"v_perm_b32 v{dst + 8*q + t}, v{b}, v{a}, s76")
            s.A(f"v_perm_b32 v{dst + 8*q + 4 + t}, v{b}, v{a}, s77")

def consumer_prep(g, wi, lab):
    g.A(f"""v_lshlrev_b32 v247, 3, v0
    v_lshlrev_b32 v244, 4, v0
    s_cmp_lg_u32 s75, {CONS_S}
    s_cbranch_scc1 {lab}""")
    g.srd(40, 4, 7168)
    g.A(f"""s_mul_i32 s65, s31, 896
    buffer_load_dwordx2 v[240:241], v247, s[40:43], s65 offen
    buffer_load_dwordx2 v[242:243], v247, s[40:43], s65 offen offset:448
    s_lshl_b32 s64, s31, 3
    s_add_u32 s64, s64, {wi}
    s_lshl_b32 s64, s64, 12
    s_add_u32 s64, s64, {WS_P}
    s_mul_i32 s66, {wi}, {HP}
    s_add_u32 s66, s66, {L_H}
    v_lshrrev_b32 v245, 4, v0
    v_and_b32 v246, 1, v0
    v_lshl_add_u32 v245, v245, 1, v246
    v_mul_u32_u24 v245, 160, v245
    v_and_b32 v246, 2, v0
    v_lshl_add_u32 v245, v246, 3, v245
    v_and_b32 v246, 12, v0
    v_add3_u32 v245, v245, v246, s66
    v_add_u32 v248, 1280, v245
    v_lshrrev_b32 v246, 3, v0
    v_lshl_add_u32 v246, v246, 5, v244
    v_add_u32 v246, {L_H}, v246
    v_mov_b32 v249, 0x00003f80
    v_mov_b32 v250, 0x3f800000
    {lab}:""")

def gen(**opt):
    g = G(**opt); A = g.A
    PB = opt.get("pollbound", 0x4000)
    KTHR, VTHR = opt.get("kthr", 12), opt.get("vthr", 6)
    WOLATE = opt.get("wolate", 0)
    P = lambda r: f"v[{r}:{r+1}]"
    A(f"; @launch grid=(256,1,1) block=(512,1,1) lds=163840")
    A('.amdgcn_target "amdgcn-amd-amdhsa--gfx950"')
    A(f".text\n.globl {KN}\n.p2align 8\n.type {KN},@function\n{KN}:")
    g.stamp(0)
    A(f"""s_cmp_ge_u32 s2, 256
    s_cbranch_scc1 L_end
    s_load_dwordx16 s[4:19], s[0:1], 0
    s_load_dwordx8 s[20:27], s[0:1], 64
    s_load_dwordx2 s[28:29], s[0:1], 96
    v_lshrrev_b32 v1, 6, v0
    v_and_b32 v0, 63, v0
    v_readfirstlane_b32 s3, v1
    s_and_b32 s30, s2, 7
    s_lshr_b32 s33, s2, 3
    s_lshr_b32 s31, s33, 2
    s_and_b32 s32, s33, 3
    s_lshl_b32 s35, s31, 3
    s_add_u32 s35, s35, s30
    s_lshl_b32 s34, s35, 21
    s_add_u32 s34, s34, 0x180000
    s_mov_b32 s76, 0x05040100
    s_mov_b32 s77, 0x07060302
    s_mov_b32 s71, 0xff
    v_mov_b32 v255, {L_FL}
    s_cmp_eq_u32 s30, s31
    s_cselect_b32 s75, s32, 7
    s_movk_i32 s72, 1024
    s_cmp_eq_u32 s3, 7
    s_cbranch_scc1 L_ctrl
    s_cmp_ge_u32 s3, 4
    s_cbranch_scc1 L_vwave""")
    A(f"""s_setprio 2
    v_lshrrev_b32 v1, 5, v0
    v_and_b32 v2, 31, v0
    v_xor_b32 v2, v2, v1
    v_lshlrev_b32 v2, 4, v2
    v_lshl_add_u32 v240, v1, 9, v2""")
    for j in range(1, 8): A(f"v_xor_b32 v{240+j}, {32*j}, v240")
    A(f"""v_and_b32 v2, 7, v0
    v_lshlrev_b32 v2, 4, v2
    v_lshrrev_b32 v1, 3, v0
    v_mul_u32_u24 v3, {8*896}, v1
    v_add_u32 v248, v3, v2
    s_cmp_eq_u32 s3, 3
    s_cselect_b32 s50, 0x40000000, 512
    v_add_u32 v249, s50, v248
    s_lshl_b32 s55, s3, 10
    v_lshlrev_b32 v250, 4, v0
    v_and_b32 v251, 3, v0
    v_lshlrev_b32 v251, 2, v251
    v_lshlrev_b32 v252, 3, v0
    v_add_u32 v252, {L_Q}, v252
    s_lshl_b32 s50, s3, 2
    s_add_u32 s50, s50, s32
    s_lshl_b32 s50, s50, 10
    s_add_u32 s50, s50, s34
    s_lshl_b32 s51, s32, 4
    s_add_u32 s51, s51, s3
    s_lshl_b32 s51, s51, 12
    s_add_u32 s51, s51, s34
    s_add_u32 s51, s51, {9*64*512}
    s_mul_i32 s52, s3, {KM}
    s_lshl_b32 s53, s3, 14
    s_add_u32 s53, s53, {KX}
    s_lshl_b32 s54, s30, 3
    s_add_u32 s54, s54, s32
    s_mul_i32 s54, s54, {64*896}
    s_lshl_b32 s56, s3, 7
    s_add_u32 s54, s54, s56
    s_lshl_b32 s58, s35, 12
    s_add_u32 s58, s58, {WS_Q}
    s_lshl_b32 s59, s35, 7
    s_add_u32 s59, s59, {WS_HI}
    s_waitcnt lgkmcnt(0)""")
    g.srd(36, 6, 0x8000000); g.srd(40, 12, 4096 * 896); g.srd(44, 28, WS_SIZE)
    wl = [(cg, h, i) for cg in range(2) for h in range(2) for i in range(8)]
    cnt = [0]
    def thr():
        if cnt[0] > KTHR: A(f"s_waitcnt vmcnt({KTHR})")
        cnt[0] += 1
    def wo_load(n):
        cg, h, i = wl[n]
        if i % 4 == 0: A(f"s_add_u32 s56, s54, {h*256*896 + i*896}")
        r = 40 + n * 4
        cnt[0] += 1
        A(f"buffer_load_dwordx4 v[{r}:{r+3}], v{248+cg}, s[40:43], s56 offen offset:{(i%4)*896} nt")
    NWI = 32 - WOLATE
    NWX = NWI * 16 // (16 + NM)
    B0AT = opt.get("b0at", 2)
    A("""s_cmp_lg_u32 s32, 0
    s_cbranch_scc1 L_xgo
    s_barrier""")
    g.lds_wait(F_WQ, 1)
    A("L_xgo:")
    nwo = 0
    for x in range(8):
        A(f"s_cmp_eq_u32 s32, 0\ns_cbranch_scc1 L_xs{x}")
        if x == B0AT: A("s_barrier")
        o = (32 * (x & 1) + 2 * (x >> 1)) * 512
        A(f"s_add_u32 m0, s53, {x*1024}\ns_add_u32 s57, s51, {o}"); thr()
        A(f"buffer_load_dwordx4 v{240+x}, s[36:39], s57 offen nt lds")
        A(f"s_cmp_eq_u32 s32, 3\ns_cbranch_scc1 L_xs{x}")
        A(f"s_add_u32 m0, s53, {8192 + x*1024}\ns_add_u32 s57, s51, {o + 32768}"); thr()
        A(f"buffer_load_dwordx4 v{240+x}, s[36:39], s57 offen nt lds")
        A(f"L_xs{x}:")
        while nwo < NWX * (x + 1) // 8: wo_load(nwo); nwo += 1
    def qloads():
        for i in range(4): A(f"buffer_load_dwordx4 v[{8+4*i}:{11+4*i}], v250, s[44:47], s58 offen offset:{i*1024} sc1")
        A("buffer_load_dword v24, v251, s[44:47], s59 offen sc1")
    def qtake(wait=None):
        A("s_cmp_lg_u32 s3, 3\ns_cbranch_scc1 L_qdone")
        g.lds_wait(F_TOK, 1)
        A(f"""ds_read_b32 v25, v255 offset:{F_TAG}
        s_mov_b32 s78, {PB}
        s_waitcnt lgkmcnt(0) vmcnt({63 if wait is None else wait})
        L_qchk:
        v_xor_b32 v27, v24, v25
        v_lshlrev_b32 v27, 4, v27
        v_cmp_ne_u32 s[62:63], 0, v27""")
        g.tagchk("v26", range(8, 24), "v25")
        A("""s_or_b64 vcc, vcc, s[62:63]
        s_cbranch_scc0 L_qok
        s_mov_b64 exec, vcc""")
        qloads()
        A(f"""s_waitcnt vmcnt(0)
        s_sub_u32 s78, s78, 1
        s_cbranch_scc0 L_qchk
        L_qok:
        s_mov_b64 exec, -1
        v_readfirstlane_b32 s68, v24""")
        for r in range(8, 16, 2): A(f"v_pk_add_f32 {P(r)}, {P(r)}, {P(r+8)}")
        for r in range(4): A(f"v_cvt_pk_bf16_f32 v{8+r}, v{8+2*r}, v{9+2*r}")
        A(f"""ds_write2st64_b64 v252, v[8:9], v[10:11] offset0:0 offset1:1
        v_cmp_ne_u32 vcc, s68, v24
        s_cmp_eq_u64 vcc, 0
        s_cselect_b32 s69, {0 if opt.get('forceslow') else 1}, 0
        v_mov_b32 v1, s69
        ds_write_b32 v255, v1 offset:{F_MODE}""")
        g.lds_inc(F_Q)
        A("L_qdone:")
    since = -99; sig = False; cnt[0] = 99
    QAT = opt.get("qat", 16); V3AT = opt.get("v3at", 10)
    A("s_mov_b32 s57, s50\ns_mov_b32 s73, 16384\ns_mov_b32 s60, s52")
    for n in range(NM):
        if n == QAT:
            A("s_cmp_lg_u32 s3, 3\ns_cbranch_scc1 L_noq"); qloads(); A("L_noq:"); since = 0
        if n == V3AT:
            A("s_cmp_lg_u32 s32, 3\ns_cbranch_scc1 L_nov3"); g.lds_inc(F_KISS); A("L_nov3:")
        A("s_mov_b32 m0, s60")
        thr()
        if since >= KTHR and not sig:
            qtake(); sig = True
        A(f"buffer_load_dwordx4 v{240+n%8}, s[36:39], s57 offen nt lds"); since += 1
        if n < NM - 1: A("s_add_u32 s57, s57, s73\ns_add_u32 s60, s60, s72")
        while nwo < NWX + (NWI - NWX) * (n + 1) // (NM - 1) and nwo < NWI: wo_load(nwo); nwo += 1; since += 1
    assert nwo == NWI
    g.lds_inc(F_KISS)
    while nwo < 32: wo_load(nwo); nwo += 1; since += 1
    if not sig:
        qtake(since)
    g.stamp(1, True)
    A(f"""v_and_b32 v1, 15, v0
    v_lshrrev_b32 v2, 4, v0
    v_xor_b32 v3, v1, v2
    v_lshlrev_b32 v3, 4, v3
    v_lshl_add_u32 v3, v1, 9, v3
    v_add_u32 v250, s53, v3
    v_xor_b32 v251, 64, v250
    v_xor_b32 v252, 128, v250
    v_xor_b32 v253, 192, v250
    v_and_b32 v3, 1, v0
    v_lshlrev_b32 v254, 9, v3
    v_lshl_add_u32 v254, v2, 4, v254
    v_add_u32 v254, {L_Q}, v254
    v_lshlrev_b32 v3, 12, v3
    v_lshl_add_u32 v248, v2, 4, v3
    v_lshl_add_u32 v249, v2, 6, v3
    s_lshl_b32 s58, s35, 13
    s_add_u32 s58, s58, {WS_S}
    s_add_u32 s59, s55, s58
    s_lshl_b32 s62, s32, 1
    s_add_u32 s62, s62, 9
    s_lshr_b32 s60, s62, 2
    s_lshl_b32 s60, s60, 8
    s_and_b32 s63, s62, 3
    s_lshl_b32 s63, s63, 4
    s_add_u32 s60, s60, s63
    s_add_u32 s60, s60, s59
    s_add_u32 s62, s62, 1
    s_and_b32 s63, s62, 3
    s_lshl_b32 s63, s63, 4
    s_add_u32 s63, s63, s59
    s_lshl_b32 s61, s32, 6
    s_add_u32 s59, s59, s61
    s_sub_u32 s61, s52, s53""")
    g.lds_wait(F_Q, 1)
    A(f"ds_read_b64 v[2:3], v255 offset:{F_TAG}")
    for i in range(8): A(f"ds_read_b128 v[{8+4*i}:{11+4*i}], v254 offset:{i*64}")
    g.stamp(2)
    DREG = [232, 236, 240, 244, 4]
    def kread(t, buf):
        o = t if t < 2 else t - 2
        for i in range(8):
            A(f"ds_read_b128 v[{buf+4*i}:{buf+4*i+3}], v{250+i%4} offset:{o*8192 + (i//4)*256}")
    def kmma(t, buf, more):
        d = DREG[t]
        for i in range(8):
            A(f"s_waitcnt lgkmcnt({7 - i + more})")
            A(f"v_mfma_f32_16x16x32_bf16 v[{d}:{d+3}], v[{buf+4*i}:{buf+4*i+3}], v[{8+4*i}:{11+4*i}], " + ("0" if i == 0 else f"v[{d}:{d+3}]"))
    bufs = [168, 200]
    A("s_waitcnt lgkmcnt(0)\nv_readfirstlane_b32 s70, v2\nv_readfirstlane_b32 s69, v3")
    kread(0, bufs[0]); kread(1, bufs[1])
    kmma(0, bufs[0], 8)
    for i in range(4): A(f"v_add_u32 v{250+i}, s61, v{250+i}")
    A(f"s_waitcnt vmcnt({WOLATE + 14})")
    kread(2, bufs[0]); kmma(1, bufs[1], 8)
    A(f"s_waitcnt vmcnt({WOLATE + 6})")
    kread(3, bufs[1]); kmma(2, bufs[0], 8)
    kmma(3, bufs[1], 0)
    A(f"s_waitcnt vmcnt({WOLATE})")
    kread(4, bufs[0])
    for r in range(232, 248): A(f"v_bfi_b32 v{r}, s71, v2, v{r}")
    kmma(4, bufs[0], 0)
    def sstores(fl, tag):
        A(f"""s_mov_b32 exec_lo, 0x00030003
        s_mov_b32 exec_hi, 0x00030003
        buffer_store_dwordx4 v[240:243], v248, s[44:47], s59 offen{fl}
        buffer_store_dwordx4 v[244:247], v248, s[44:47], s59 offen offset:256{fl}
        s_cmp_eq_u32 s32, 0
        s_cbranch_scc1 L_nox{tag}
        buffer_store_dwordx4 v[232:235], v249, s[44:47], s60 offen{fl}
        s_cmp_eq_u32 s32, 3
        s_cbranch_scc1 L_nox{tag}
        buffer_store_dwordx4 v[236:239], v249, s[44:47], s63 offen offset:768{fl}
        L_nox{tag}:""")
        for r in range(4, 8): A(f"v_bfi_b32 v{r}, s71, v2, v{r}")
        A(f"""s_mov_b32 exec_hi, 0x00000003
        buffer_store_dwordx4 v[4:7], v248, s[44:47], s59 offen offset:512{fl}""")
    A("s_cmp_eq_u32 s69, 0\ns_cbranch_scc1 L_sslow")
    sstores("", "a"); A("s_branch L_ssd\nL_sslow:"); sstores(" sc1", "b"); A("L_ssd:")
    g.lds_inc(F_QK)
    g.stamp(4, True)
    for u in range(4):
        if u == (32 - WOLATE) // 8 : A("s_waitcnt vmcnt(0)")
        for t in range(4): g.transpose_pair(40 + 32 * u, 8 + 32 * u, t)
    A("""s_cmp_ge_u32 s3, 2
    s_cbranch_scc1 L_k23""")
    A(f"""v_lshlrev_b32 v2, 4, v0
    s_lshl_b32 s59, s3, 12
    s_add_u32 s59, s59, s58
    v_lshrrev_b32 v3, 4, v0
    v_lshlrev_b32 v3, 8, v3
    v_and_b32 v4, 15, v0
    v_lshl_add_u32 v3, v4, 2, v3
    s_lshl_b32 s60, s3, 6
    s_add_u32 s60, s60, {L_P}
    v_add_u32 v3, s60, v3
    s_mov_b32 s78, {PB}
    L_spoll:""")
    for i in range(4): A(f"buffer_load_dwordx4 v[{168+4*i}:{171+4*i}], v2, s[44:47], s59 offen offset:{i*1024} sc1")
    A("s_waitcnt vmcnt(0)")
    g.tagchk("v4", range(168, 184), "s70")
    A(f"""s_cbranch_vccz L_sok
    s_mov_b64 exec, vcc
    s_sleep {opt.get('ssleep', 4)}
    s_sub_u32 s78, s78, 1
    s_cbranch_scc0 L_spoll
    L_sok:
    s_mov_b64 exec, -1""")
    g.stamp(5)
    A("v_max3_f32 v4, v168, v169, v170")
    for r in range(171, 183, 2): A(f"v_max3_f32 v4, v4, v{r}, v{r+1}")
    A("v_max_f32 v4, v4, v183")
    g.wave_reduce("v_max_f32", ["v4"])
    A(f"""v_readlane_b32 s60, v4, 63
    v_mov_b32 v5, {f32(LOG2E/16)}
    s_nop 0
    v_mul_f32 v4, s60, v5""")
    for r in range(168, 184): A(f"v_fma_f32 v{r}, v{r}, v5, -v4")
    for r in range(168, 184): A(f"v_exp_f32 v{r}, v{r}")
    A("v_pk_add_f32 v[6:7], v[168:169], v[170:171]")
    for r in range(172, 184, 2): A(f"v_pk_add_f32 v[6:7], v[6:7], v[{r}:{r+1}]")
    A("v_add_f32 v4, v6, v7")
    g.wave_reduce("v_add_f32", ["v4"])
    A("""v_rcp_f32 v4, v4
    s_nop 0
    v_readlane_b32 s60, v4, 63
    s_nop 1""")
    for r in range(168, 184, 2): A(f"v_pk_mul_f32 v[{r}:{r+1}], v[{r}:{r+1}], s[60:61] op_sel_hi:[1,0]")
    for i in range(4):
        r = 168 + 4 * i
        A(f"v_cvt_pk_bf16_f32 v{r}, v{r}, v{r+2}\nv_cvt_pk_bf16_f32 v{r+1}, v{r+1}, v{r+3}")
        A(f"ds_write_b32 v3, v{r} offset:{i*1024}\nds_write_b32 v3, v{r+1} offset:{i*1024+128}")
    g.lds_inc(F_P)
    A("s_branch L_kjoin")
    A(f"""L_k23:
    s_cmp_lg_u32 s75, {CONS_S}
    s_cbranch_scc1 L_kjoin
    s_and_b32 s62, s3, 1
    v_lshlrev_b32 v2, 4, v0
    s_mul_i32 s59, s62, {128*NT*4}
    s_add_u32 s59, s59, {WS_T}
    s_add_u32 s60, s59, 4096
    s_add_u32 s61, s59, 8192
    s_lshl_b32 s62, s62, 17
    v_add_u32 v3, s62, v2
    s_mov_b32 s78, {PB}
    L_tpoll:""")
    nl = NT // 2
    for i in range(nl): A(f"buffer_load_dwordx4 v[{168+4*i}:{171+4*i}], v2, s[44:47], s{59+i//4} offen offset:{(i%4)*1024} sc1")
    A("s_waitcnt vmcnt(0)")
    g.tagchk("v4", range(168, 168 + 4 * nl), "s70")
    A(f"""s_cbranch_vccz L_tok
    s_mov_b64 exec, vcc
    s_sleep 4
    s_sub_u32 s78, s78, 1
    s_cbranch_scc0 L_tpoll
    L_tok:
    s_mov_b64 exec, -1""")
    g.lds_wait(F_QK, 4)
    for i in range(nl): A(f"ds_write_b128 v3, v[{168+4*i}:{171+4*i}] offset:{L_TPOS + i*1024}")
    g.stamp(5)
    A(f"""L_kjoin:
    v_lshrrev_b32 v2, 4, v0
    v_and_b32 v3, 1, v0
    v_lshl_add_u32 v2, v2, 1, v3
    v_lshlrev_b32 v2, 4, v2
    v_bfe_u32 v3, v0, 1, 3
    v_mul_u32_u24 v3, {OP}, v3
    v_add_u32 v2, v2, v3
    v_add_u32 v2, {L_O}, v2
    v_lshlrev_b32 v3, 2, v0
    s_lshl_b32 s59, s35, 2
    s_add_u32 s59, s59, s32
    s_lshl_b32 s59, s59, 10
    s_lshl_b32 s60, s3, 8
    s_add_u32 s59, s59, s60
    s_add_u32 s59, s59, {WS_P}""")
    consumer_prep(g, "s3", "L_kprep")
    A("s_waitcnt vmcnt(0) lgkmcnt(0)")
    g.stamp(6)
    A(f"""s_barrier
    ds_read_b128 v[232:235], v2
    ds_read_b128 v[236:239], v2 offset:128""")
    def omma(cg, h, j):
        a = 168 + 32 * cg + 4 * j; b = 8 + 32 * (2 * cg + h) + 4 * j
        return f"v_mfma_f32_16x16x32_bf16 v[{a}:{a+3}], v[{232+4*h}:{235+4*h}], v[{b}:{b+3}], " + ("0" if h == 0 else f"v[{a}:{a+3}]")
    def opk(cg, k):
        a = 168 + 32 * cg + 4 * k
        return f"v_pk_add_f32 {P(a)}, {P(a)}, {P(a+2)}"
    def oadd(cg, k):
        jj = k % 4; a = 168 + 32 * cg + 4 * k; r = 152 + 4 * cg + jj
        if k < 4: return f"v_add_f32_dpp v{r}, v{a+1}, v{a} row_ror:8 row_mask:0xf bank_mask:0x3"
        return f"v_add_f32_dpp v{r}, v{a}, v{a+1} row_ror:8 row_mask:0xf bank_mask:0xc"
    def ofin(cg):
        r = 152 + 4 * cg
        return [f"v_permlane32_swap_b32 v{r}, v{r+2}", f"v_permlane32_swap_b32 v{r+1}, v{r+3}", f"v_add_f32 v{r}, v{r}, v{r+2}",
                f"v_add_f32 v{r+1}, v{r+1}, v{r+3}", "s_nop 1", f"v_permlane16_swap_b32 v{r}, v{r+1}", f"v_add_f32 v{r}, v{r}, v{r+1}"]
    JO = [0, 4, 2, 6, 1, 5, 3, 7]
    def ochain(cgs):
        steps = [(cg, j) for cg in cgs for j in JO]
        pend = []
        for n, (cg, j) in enumerate(steps):
            if n == 0: A("s_waitcnt lgkmcnt(1)")
            A(omma(cg, 0, j))
            if n == 0: A("s_waitcnt lgkmcnt(0)")
            if n >= 3: A(opk(*steps[n - 3]))
            if pend: A(pend.pop(0))
            A(omma(cg, 1, j))
            if n >= 4: A(oadd(*steps[n - 4]))
            if pend: A(pend.pop(0))
            if n == 11: pend = ["s_nop 0"] + ofin(cgs[0])
        N = len(steps)
        while pend: A(pend.pop(0))
        A(opk(*steps[N - 3])); A(oadd(*steps[N - 4]))
        A("s_nop 0"); A(opk(*steps[N - 2])); A(oadd(*steps[N - 3]))
        A("s_nop 2"); A(opk(*steps[N - 1])); A(oadd(*steps[N - 2]))
        f = ofin(cgs[-1])
        A(f[0]); A(oadd(*steps[N - 1])); A(f[2]); A("s_nop 0"); A(f[1])
        for x in f[3:]: A(x)
        A("v_cvt_pk_bf16_f32 v152, v152, " + ("v156" if len(cgs) == 2 else "0"))
    A("s_cmp_eq_u32 s3, 3\ns_cbranch_scc1 L_o3")
    ochain([0, 1])
    A("s_branch L_kdone\nL_o3:")
    ochain([0])
    A("L_kdone:\nbuffer_store_dword v152, v3, s[44:47], s59 offen sc1")
    g.stamp(7, True)
    A(f"s_cmp_eq_u32 s75, {CONS_S}\ns_cbranch_scc1 L_gather\ns_branch L_fin")

    g.role = "v"
    A(f"""L_vwave:
    s_sub_u32 s3, s3, 4
    v_lshlrev_b32 v2, 2, v0
    v_lshl_add_u32 v2, s3, 10, v2
    v_mov_b32 v160, 0""")
    def tloads(ng):
        g.srd(36, 16, 3584); g.srd(40, 18, 3584); g.srd(48, 20, 3584); g.srd(44, 28, WS_SIZE)
        for k, srd in enumerate((36, 40, 48)):
            for i in range(ng): A(f"buffer_load_dword v{144+4*k+i}, v2, s[{srd}:{srd+3}], 0 offen offset:{i*256}")
        A("global_load_ushort v160, v160, s[22:23]")
    def tloop(ng, tag):
        A(f"""s_and_b32 s60, s2, 127
        s_mul_i32 s60, s60, {NT}
        s_add_u32 s60, s60, {ELO*128}
        s_lshr_b32 s61, s2, 7
        s_lshl_b32 s61, s61, 15
        s_add_u32 s60, s60, s61
        s_lshl_b32 s60, s60, 16
        s_add_u32 s61, s60, {(NT//2) << 16}
        v_mov_b32 v38, {f32(K1)}
        v_mov_b32 v39, {f32(K0)}
        v_and_b32 v4, 15, v0""")
        for r in range(104, 112): A(f"v_mov_b32 v{r}, 0")
        A(f"s_mov_b32 s62, 0\ns_waitcnt vmcnt({1 if ng == 4 else 9})")
        if opt.get("stamps") is True and ng == 4: A("s_memtime s[98:99]"); g.stamp(1)
        for k in range(3):
            for i in range(ng): A(f"v_lshlrev_b32 v{8+10*k+2*i}, 16, v{144+4*k+i}\nv_and_b32 v{9+10*k+2*i}, 0xffff0000, v{144+4*k+i}")
        A(f".p2align 3\nL_tloop{tag}:")
        CH = [(tt, i) for i in range(ng) for tt in range(2)]
        U = lambda tt, i: 62 + 4 * i + 2 * tt
        Z = lambda tt, i: 82 + 4 * i + 2 * tt
        A("v_cmp_eq_u32_e64 vcc, s62, v4")
        for tt, i in CH: A(f"v_pk_fma_f32 {P(U(tt,i))}, {P(8+2*i)}, s[60:61], {P(18+2*i)} op_sel:[0,{tt},0] op_sel_hi:[1,{tt},1]")
        A("v_cndmask_b32 v5, 0, 1.0, vcc")
        for tt, i in CH: A(f"v_pk_mul_f32 {P(Z(tt,i))}, {P(U(tt,i))}, {P(U(tt,i))}")
        for tt, i in CH: A(f"v_pk_fma_f32 {P(Z(tt,i))}, {P(Z(tt,i))}, v[38:39], v[38:39] op_sel:[0,0,1] op_sel_hi:[1,0,1]")
        for tt, i in CH: A(f"v_pk_mul_f32 {P(Z(tt,i))}, {P(Z(tt,i))}, {P(U(tt,i))}")
        for r in range(82, 82 + 4 * ng): A(f"v_exp_f32 v{r}, v{r}")
        for tt, i in CH: A(f"v_pk_mul_f32 {P(U(tt,i))}, {P(U(tt,i))}, {P(28+2*i)}")
        for tt, i in CH: A(f"v_pk_add_f32 {P(Z(tt,i))}, {P(Z(tt,i))}, 1.0 op_sel_hi:[1,0]")
        for r in range(82, 82 + 4 * ng): A(f"v_rcp_f32 v{r}, v{r}")
        for tt, i in CH:
            if i == 0: A(f"v_pk_mul_f32 {P(112+2*tt)}, {P(U(tt,i))}, {P(Z(tt,i))}")
            else: A(f"v_pk_fma_f32 {P(112+2*tt)}, {P(U(tt,i))}, {P(Z(tt,i))}, {P(112+2*tt)}")
        A(f"""v_add_f32 v112, v112, v113
        v_add_f32 v114, v114, v115
        s_add_u32 s60, s60, 0x10000
        s_add_u32 s61, s61, 0x10000
        v_mfma_f32_16x16x4_f32 v[104:107], v5, v112, v[104:107]
        v_mfma_f32_16x16x4_f32 v[108:111], v5, v114, v[108:111]
        s_add_u32 s62, s62, 1
        s_cmp_lt_u32 s62, {opt.get('titers', NT//2)}
        s_cbranch_scc1 L_tloop{tag}""")
    A(f"""s_getpc_b64 s[52:53]
    L_pc:
    s_sub_u32 s52, s52, L_pc-{KN}
    s_subb_u32 s53, s53, 0
    s_mul_i32 s51, s33, 3
    s_add_u32 s51, s51, s3
    s_lshl_b32 s51, s51, 8
    v_and_b32 v3, 1, v0
    v_lshl_add_u32 v3, v3, 7, s51
    v_min_u32 v3, L_code_end-{KN}-4, v3
    s_waitcnt lgkmcnt(0)""")
    tloads(4)
    if not opt.get("nopre"):
        A("s_mov_b64 exec, 3\nglobal_load_dword v161, v3, s[52:53]\ns_mov_b64 exec, -1")
    A("s_barrier")
    tloop(4, "a")
    if opt.get("stamps") is True: A("s_memtime s[100:101]"); g.stamp(2)
    A("s_branch L_tend")
    A(f"""L_ctrl:
    s_setprio 3
    s_mov_b32 s3, 3
    v_lshlrev_b32 v2, 2, v0
    v_add_u32 v3, {L_TS}, v2
    v_mov_b32 v160, 0
    ds_write_b32 v3, v160
    v_add_u32 v2, 3072, v2
    v_lshlrev_b32 v12, 4, v0
    v_lshrrev_b32 v1, 4, v0
    v_and_b32 v3, 15, v0
    v_lshlrev_b32 v3, 4, v3
    v_lshlrev_b32 v4, 5, v1
    v_xor_b32 v3, v3, v4
    v_lshl_add_u32 v248, v1, 13, v3
    v_xor_b32 v249, 128, v248
    s_getreg_b32 s68, hwreg(HW_REG_XCC_ID, 0, 4)
    s_lshl_b32 s68, s68, 28
    s_lshl_b32 s52, s35, 7
    s_add_u32 s52, s52, {WS_HI}
    s_lshl_b32 s53, s32, 2
    s_add_u32 s53, s53, s52
    s_and_b32 s54, s31, 3
    s_lshr_b32 s55, s31, 2
    s_lshl_b32 s58, s30, 2
    s_add_u32 s58, s58, s54
    s_lshl_b32 s58, s58, 8
    s_mul_i32 s56, s55, {224*8192}
    s_add_u32 s58, s58, s56
    s_waitcnt lgkmcnt(0)
    s_load_dword s70, s[28:29], {WS_E}""")
    tloads(2)
    A(f"""v_mov_b32 v8, -1
    v_mov_b32 v9, -1
    v_mov_b32 v10, -1
    v_mov_b32 v11, -1
    s_lshl_b32 s56, s35, 2
    s_add_u32 s56, s56, s32
    s_lshl_b32 s56, s56, 10
    s_add_u32 s56, s56, {WS_P}
    buffer_store_dwordx4 v[8:11], v12, s[44:47], s56 offen sc1""")
    A("s_barrier\ns_cmp_lg_u32 s32, 0\ns_cbranch_scc1 L_hello")
    g.srd(60, 10, 448 * 8192); g.srd(64, 4, 7168)
    A(f"s_mov_b32 m0, {L_XS}\ns_movk_i32 s57, 4096\ns_mov_b32 s73, 32768")
    for i in range(7):
        if i == 4: A(f"s_mov_b32 m0, {L_XS + 4096}\ns_nop 0")
        A(f"buffer_load_dwordx4 v12, s[64:67], {'0' if i < 4 else 's57'} offen offset:{(i%4)*1024} lds")
    A(f"s_mov_b32 m0, {L_WQ}\ns_nop 0")
    for d in range(56):
        if d == 47: A("s_waitcnt vmcnt(53)")
        A(f"buffer_load_dwordx4 v{248+(d>>1)%2}, s[60:63], s58 offen nt lds")
        if d < 55: A("s_add_u32 m0, m0, s72\ns_add_u32 s58, s58, s73")
    g.lds_inc(F_WQ)
    A(f"""L_hello:
    s_waitcnt lgkmcnt(0)
    s_mul_i32 s70, s70, 1664525
    s_add_u32 s70, s70, 1013904223
    s_and_b32 s69, s70, 0x0fffffff
    s_or_b32 s68, s68, s69
    v_mov_b32 v13, s70
    v_mov_b32 v3, s68
    s_mov_b64 exec, 1
    buffer_store_dword v3, off, s[44:47], s53 sc1
    v_mov_b32 v1, 1
    ds_write2_b32 v255, v1, v13 offset0:{F_TOK//4} offset1:{F_TAG//4}
    s_mov_b64 exec, -1
    s_cmp_lg_u32 s32, 0
    s_cbranch_scc1 L_noqp
    v_and_b32 v4, 15, v0
    v_lshrrev_b32 v5, 4, v0
    v_mul_u32_u24 v6, 896, v4
    v_lshl_add_u32 v6, v5, 4, v6
    s_mul_i32 s56, s55, 448
    s_sub_u32 s57, {L_XS + 448}, s56
    s_add_u32 s56, s56, {L_XS}
    v_add_u32 v7, s57, v6
    v_add_u32 v6, s56, v6
    v_mov_b32 v1, 0x3f803f80""")
    for r in range(16, 72): A(f"v_mov_b32 v{r}, v1")
    g.stamp(1)
    A("s_waitcnt vmcnt(57)\ns_mov_b32 exec_lo, 0x00ff00ff\ns_mov_b32 exec_hi, 0x00ff00ff")
    for i in range(14): A(f"ds_read_b128 v[{16+4*i}:{19+4*i}], v{6 + i//7} offset:{(i%7)*64}")
    A(f"""s_mov_b64 exec, -1
    v_lshrrev_b32 v14, 2, v4
    v_lshl_add_u32 v14, v5, 3, v14
    v_lshlrev_b32 v14, 8, v14
    v_and_b32 v8, 3, v0
    v_lshl_add_u32 v14, v8, 3, v14
    v_and_b32 v9, 28, v0
    v_lshl_add_u32 v14, v9, 3, v14
    v_add_u32 v240, {L_WQ}, v14""")
    for ct in range(1, 8): A(f"v_xor_b32 v{240+ct}, {32*ct}, v240")
    for i in range(14):
        A(f"s_waitcnt lgkmcnt({13-i})")
        A(f"v_mfma_f32_16x16x32_bf16 v[136:139], v[{16+4*i}:{19+4*i}], v[{16+4*i}:{19+4*i}], " + ("0" if i == 0 else "v[136:139]"))
    A(f"""v_add_u32 v9, 32, v4
    v_lshlrev_b32 v9, 2, v9
    v_and_b32 v10, 4, v0
    v_lshl_add_u32 v10, v10, 2, v4
    v_lshlrev_b32 v10, 2, v10
    v_cmp_eq_u32 vcc, 1, v8
    v_cmp_eq_u32 s[60:61], 2, v8
    v_cmp_eq_u32 s[62:63], 3, v8
    v_cndmask_b32 v11, v136, v137, vcc
    v_cndmask_b32 v11, v11, v138, s[60:61]
    v_cndmask_b32 v11, v11, v139, s[62:63]
    ds_bpermute_b32 v9, v9, v136
    ds_bpermute_b32 v10, v10, v11
    v_lshlrev_b32 v6, 15, v4
    v_lshl_add_u32 v6, v5, 4, v6
    s_lshl_b32 s50, s30, 12
    s_lshl_b32 s51, s31, 9
    s_add_u32 s50, s50, s51
    s_add_u32 s50, s50, {WS_Q}
    v_mov_b32 v11, {f32(1/448)}""")
    A(f"""s_waitcnt lgkmcnt(0)
    v_mul_f32 v9, v9, v11
    v_mul_f32 v10, v10, v11
    v_fma_f32 v10, -v9, v9, v10
    v_max_f32 v10, 0, v10
    v_add_f32 v10, {f32(1e-5)}, v10
    v_rsq_f32 v10, v10
    v_sub_f32 v9, 0, v9""")
    def wread(i):
        b = 72 + 16 * (i % 2); st = i // 2
        if i % 2 == 0: A(f"s_waitcnt vmcnt({1 + 48 - 8*st})")
        for c in range(4):
            ct = 4 * (i % 2) + c
            A(f"ds_read_b64_tr_b16 v[{b+4*c}:{b+4*c+1}], v{240+ct} offset:{st*8192}\nds_read_b64_tr_b16 v[{b+4*c+2}:{b+4*c+3}], v{240+ct} offset:{st*8192+1024}")
    wread(0)
    for i in range(14):
        b = 72 + 16 * (i % 2); st = i // 2
        if i < 13: wread(i + 1)
        for c in range(4):
            A(f"s_waitcnt lgkmcnt({6 - 2*c + (8 if i < 13 else 0)})")
            d = 104 + 16 * (i % 2) + 4 * c
            A(f"v_mfma_f32_16x16x32_bf16 v[{d}:{d+3}], v[{b+4*c}:{b+4*c+3}], v[{16+4*st}:{19+4*st}], " + ("0" if st == 0 else f"v[{d}:{d+3}]"))
    for hf in range(2):
        r0 = 104 + 16 * hf
        for r in range(16): A(f"v_fmac_f32_dpp v{r0+r}, v{r0+r}, v9 row_newbcast:8 row_mask:0xf bank_mask:0xf")
        for r in range(0, 16, 2): A(f"v_pk_mul_f32 {P(r0+r)}, {P(r0+r)}, v[10:11] op_sel_hi:[1,0]")
        for r in range(16): A(f"v_bfi_b32 v{r0+r}, s71, v13, v{r0+r}")
        A("s_mov_b32 exec_lo, 0x00ff00ff\ns_mov_b32 exec_hi, 0x00ff00ff")
        for c in range(4): A(f"buffer_store_dwordx4 v[{r0+4*c}:{r0+4*c+3}], v6, s[44:47], s50 offen offset:{(4*hf+c)*64} sc1")
        if hf == 0: A("s_mov_b64 exec, -1")
    A("s_mov_b64 exec, -1")
    g.stamp(2)
    A("s_branch L_qpd\nL_noqp:\ns_waitcnt vmcnt(1)\nL_qpd:\ns_setprio 0")
    tloop(2, "b")
    A(f"""L_tend:
    v_and_b32 v2, 48, v0
    v_add_u32 v2, {L_TS}, v2
    s_nop 5""")
    for m in (8, 4, 2, 1):
        for r in range(104, 112): A(f"v_add_f32_dpp v{r}, v{r}, v{r} row_ror:{m} row_mask:0xf bank_mask:0xf")
    A("s_mov_b32 exec_lo, 0x00010001\ns_mov_b32 exec_hi, 0x00000001")
    for r in range(8): A(f"ds_add_f32 v2, v{104+r} offset:{(r%4)*4 + (r//4)*NT*2}")
    A(f"""s_mov_b64 exec, 1
    v_mov_b32 v1, 1
    ds_add_rtn_u32 v1, v255, v1 offset:{F_T}
    s_waitcnt lgkmcnt(0)
    v_readfirstlane_b32 s62, v1
    s_mov_b64 exec, -1
    s_cmp_lg_u32 s62, 3
    s_cbranch_scc1 L_vload
    v_lshlrev_b32 v2, 4, v0
    v_add_u32 v3, {L_TS}, v2
    s_mov_b64 exec, {(1 << (NT//4)) - 1}
    ds_read_b128 v[8:11], v3
    ds_read_b32 v12, v255 offset:{F_TAG}
    s_mul_i32 s62, s2, {NT*4}
    s_add_u32 s62, s62, {WS_T}
    s_waitcnt vmcnt(0) lgkmcnt(0)
    v_lshlrev_b32 v6, 16, v160""")
    for r in range(8, 12): A(f"v_add_f32 v{r}, v{r}, v6\nv_bfi_b32 v{r}, s71, v12, v{r}")
    A(f"""s_setprio 3
    buffer_store_dwordx4 v[8:11], v2, s[44:47], s62 offen sc1
    s_setprio 0
    s_mov_b64 exec, -1""")
    A(f"""L_vload:
    v_lshrrev_b32 v1, 3, v0
    v_and_b32 v3, 7, v0
    v_lshlrev_b32 v2, 4, v3
    v_lshl_add_u32 v2, v1, 9, v2
    s_lshl_b32 s50, s3, 12
    s_lshl_b32 s51, s32, 7
    s_add_u32 s50, s50, s51
    s_add_u32 s50, s50, s34
    s_add_u32 s67, s3, 4
    s_cmp_eq_u32 s75, {CONS_S if opt.get('consfast', 1) else 99}
    s_cselect_b64 vcc, -1, 0""")
    g.srd(36, 8, 0x8000000)
    consumer_prep(g, "s67", "L_vprep")
    g.lds_wait(F_KISS, opt.get('kiss', 4))
    VLAG = opt.get("vlag", 10)
    def vpair(p, outstanding):
        u, t = divmod(p, 4)
        A(f"s_waitcnt vmcnt({outstanding})")
        g.transpose_pair(40 + 32 * u, 8 + 32 * u, t)
    def vmma(u):
        for j in range(8):
            a = 168 + 4 * j; b = 8 + 32 * u + 4 * j
            A(f"v_mfma_f32_16x16x32_bf16 v[{a}:{a+3}], v[{200+4*u}:{203+4*u}], v[{b}:{b+3}], " + ("0" if u == 0 else f"v[{a}:{a+3}]"))
    A("s_mov_b32 s73, 16384")
    np_ = 0
    for i in range(32):
        if i > VTHR: A(f"s_cbranch_vccnz L_vt{i}\ns_waitcnt vmcnt({VTHR})\nL_vt{i}:")
        A(f"buffer_load_dwordx4 v[{40+4*i}:{43+4*i}], v2, s[36:39], s50 offen nt")
        if i < 31: A("s_add_u32 s50, s50, s73")
        if i - (2 * np_ + 1) >= VLAG:
            vpair(np_, i - (2 * np_ + 1)); np_ += 1
        if i == 4:
            A(f"""v_and_b32 v4, 12, v0
            v_lshlrev_b32 v4, 4, v4
            v_and_b32 v5, 48, v0
            v_add_u32 v4, v4, v5
            s_lshl_b32 s51, s3, 10
            s_add_u32 s51, s51, {L_P}
            v_add_u32 v4, s51, v4
            v_lshlrev_b32 v5, 4, v3
            v_bfe_u32 v6, v0, 4, 1
            v_lshl_add_u32 v5, v6, 7, v5
            v_lshrrev_b32 v6, 5, v0
            v_mul_u32_u24 v6, {OP}, v6
            s_mul_i32 s51, s3, {2*OP}
            s_add_u32 s51, s51, {L_O}
            v_add3_u32 v5, v5, v6, s51""")
    g.stamp(4, True)
    while np_ < 12: vpair(np_, 30 - 2 * np_); np_ += 1
    g.lds_wait(F_P, 2)
    for u in range(4): A(f"ds_read_b128 v[{200+4*u}:{203+4*u}], v4 offset:{u*256}")
    A("s_waitcnt lgkmcnt(0)")
    g.stamp(5, True)
    vmma(0); vmma(1); vmma(2)
    g.role = "w"; g.stamp(1, True); g.role = "v"
    while np_ < 16: vpair(np_, 30 - 2 * np_); np_ += 1
    g.role = "w"; g.stamp(2, True); g.role = "v"
    vmma(3)
    A("s_mov_b32 exec_lo, 0x00ff00ff\ns_mov_b32 exec_hi, 0xff00ff00")
    for t in range(4):
        A(f"v_cvt_pk_bf16_f32 v{136+t}, v{168+8*t}, v{172+8*t}")
        if t < 3: A("s_nop 0")
    A("ds_write_b128 v5, v[136:139]\ns_waitcnt lgkmcnt(0)")
    g.stamp(6, True)
    A(f"""s_barrier
    s_cmp_lg_u32 s75, {CONS_S}
    s_cbranch_scc1 L_fin""")
    A(f"""s_mov_b64 exec, -1
    L_gather:
    s_mov_b32 s52, 0xf
    s_mov_b32 s78, {PB}""")
    for p in range(4): A(f"buffer_load_dwordx4 v[{40+4*p}:{43+4*p}], v244, s[44:47], s64 offen offset:{p*1024} sc1")
    for r in range(8, 24): A(f"v_mov_b32 v{r}, 0")
    for k in range(4):
        A(f"v_lshlrev_b32 v{24+2*k}, 16, v{240+k}\nv_and_b32 v{25+2*k}, 0xffff0000, v{240+k}")
    if opt.get("stamps"): A("s_waitcnt lgkmcnt(0)")
    A("L_pchk:\ns_waitcnt vmcnt(0)")
    for p in range(4):
        r = 40 + 4 * p
        A(f"s_bitcmp0_b32 s52, {p}\ns_cbranch_scc1 L_pc{p}")
        g.umax("v1", range(r, r + 4))
        A(f"""v_cmp_eq_u32 vcc, -1, v1
        s_cbranch_vccz L_pa{p}
        buffer_load_dwordx4 v[{r}:{r+3}], v244, s[44:47], s64 offen offset:{p*1024} sc1
        s_branch L_pc{p}
        L_pa{p}:
        s_bitset0_b32 s52, {p}""")
        for k in range(4): A(f"v_dot2c_f32_bf16 v{16+k}, v{r+k}, v249\nv_dot2c_f32_bf16 v{20+k}, v{r+k}, v250")
        A(f"L_pc{p}:")
    A(f"""s_cmp_eq_u32 s52, 0
    s_cbranch_scc1 L_pok
    s_sub_u32 s78, s78, 1
    s_cbranch_scc0 L_pchk
    L_pok:
    s_nop 0
    ds_write2_b32 v245, v16, v17 offset0:0 offset1:8
    ds_write2_b32 v245, v18, v19 offset0:16 offset1:24
    ds_write2_b32 v248, v20, v21 offset0:0 offset1:8
    ds_write2_b32 v248, v22, v23 offset0:16 offset1:24
    s_mov_b64 exec, 1
    v_mov_b32 v1, 1
    ds_add_rtn_u32 v1, v255, v1 offset:{F_FIN}
    s_mov_b32 exec_lo, -1
    s_mov_b32 exec_hi, 0x00ffffff""")
    def hread(k): A(f"ds_read_b128 v[{104+8*k}:{107+8*k}], v246 offset:{k*HP}\nds_read_b128 v[{108+8*k}:{111+8*k}], v246 offset:{k*HP + 1120}")
    for k in range(5): hread(k)
    A(f"""s_waitcnt lgkmcnt(10)
    v_readfirstlane_b32 s51, v1
    s_cmp_lg_u32 s51, 7
    s_cbranch_scc1 L_fin""")
    g.role = "f"; g.stamp(3); g.role = "v"
    for k in range(8):
        if k < 3: hread(5 + k)
        A(f"s_waitcnt lgkmcnt({min(10, 14-2*k)})")
        for q in range(0, 8, 2): A(f"v_pk_add_f32 {P(8+q)}, {P((24 if k == 0 else 8)+q)}, {P(104+8*k+q)}")
    A(f"""s_mov_b64 exec, -1
    v_pk_add_f32 v[16:17], v[8:9], v[10:11]
    v_pk_mul_f32 v[18:19], v[8:9], v[8:9]
    v_pk_add_f32 v[16:17], v[16:17], v[12:13]
    v_pk_fma_f32 v[18:19], v[10:11], v[10:11], v[18:19]
    v_pk_add_f32 v[16:17], v[16:17], v[14:15]
    v_pk_fma_f32 v[18:19], v[12:13], v[12:13], v[18:19]
    v_add_f32 v16, v16, v17
    v_pk_fma_f32 v[18:19], v[14:15], v[14:15], v[18:19]
    v_add_f32 v18, v18, v19""")
    g.wave_reduce("v_add_f32", ["v16", "v18"])
    A(f"""v_mov_b32 v17, {f32(1/448)}
    v_mul_f32 v16, v16, v17
    v_mul_f32 v18, v18, v17
    v_fma_f32 v18, -v16, v16, v18
    v_max_f32 v18, 0, v18
    v_add_f32 v19, {f32(1e-5)}, v18
    v_rsq_f32 v19, v19
    v_mov_b32 v20, {f32(1e-5)}
    v_mul_f32 v18, v18, v19
    v_fma_f32 v18, v18, v19, v20
    v_rsq_f32 v18, v18
    v_readlane_b32 s60, v16, 63
    v_mul_f32 v18, v18, v19
    s_mov_b32 s62, {(ELO*128) * 0x10001}
    v_readlane_b32 s61, v18, 63
    s_mov_b32 exec_hi, 0x00ffffff
    s_mov_b32 s63, 0x1fffc""")
    for q in range(0, 8, 2): A(f"v_pk_add_f32 {P(16+q)}, {P(8+q)}, s[60:61] op_sel_hi:[1,0] neg_lo:[0,1] neg_hi:[0,1]")
    for q in range(0, 8, 2): A(f"v_pk_mul_f32 {P(16+q)}, {P(16+q)}, s[60:61] op_sel:[0,1] op_sel_hi:[1,1]")
    for q in range(4): A(f"v_cvt_pk_bf16_f32 v{24+q}, v{16+2*q}, v{17+2*q}")
    for q in range(4): A(f"v_pk_sub_u16 v{28+q}, v{24+q}, s62")
    for q in range(8):
        A(f"v_lshlrev_b32_sdwa v{16+q}, 2, v{28+q//2} dst_sel:DWORD dst_unused:UNUSED_PAD src0_sel:DWORD src1_sel:WORD_{q%2}")
        A(f"ds_read_b32 v{40+q}, v{16+q} offset:{L_TPOS}")
    A(f"ds_read_b32 v38, v255 offset:{F_TAG}")
    g.srd(40, 24, 7168)
    for q in range(8): A(f"v_and_b32 v{16+q}, s63, v{16+q}")
    g.umax("v1", range(16, 24))
    A(f"""v_cmp_le_u32 vcc, {128*NT*4}, v1
    s_cbranch_vccnz L_fallback
    L_fbret:
    s_waitcnt lgkmcnt(0)""")
    for q in range(0, 8, 2): A(f"v_pk_add_f32 {P(8+q)}, {P(8+q)}, {P(40+q)}")
    for q in range(4): A(f"v_cvt_pk_bf16_f32 v{8+q}, v{8+2*q}, v{9+2*q}")
    A(f"""buffer_store_dwordx2 v[8:9], v247, s[40:43], s65 offen
    buffer_store_dwordx2 v[10:11], v247, s[40:43], s65 offen offset:448
    s_cmp_lg_u32 s31, 0
    s_cbranch_scc1 L_noe
    s_mov_b64 exec, 1
    buffer_store_dword v38, off, s[44:47], 0 offset:{WS_E}
    L_noe:""")
    g.role = "f"; g.stamp(8); g.role = "v"
    A("L_fin:")
    if opt.get("stamps"):
        A("s_waitcnt lgkmcnt(0)\ns_mov_b64 exec, 1")
        for k in range(9): A(f"v_mov_b32 v{8+k}, s{80+2*k}")
        A(f"""s_getreg_b32 s50, hwreg(HW_REG_XCC_ID)
        v_mov_b32 v17, s50
        v_mov_b32 v18, s78
        s_sub_u32 s98, s100, s98
        v_mov_b32 v19, s98
        s_lshl_b32 s50, s2, 3
        s_add_u32 s50, s50, s74
        s_lshl_b32 s50, s50, 6
        s_add_u32 s50, s50, {WS_STAMP}
        buffer_store_dwordx4 v[8:11], off, s[44:47], s50
        buffer_store_dwordx4 v[12:15], off, s[44:47], s50 offset:16
        buffer_store_dwordx4 v[16:19], off, s[44:47], s50 offset:32""")
    pr = opt.get("probe")
    if pr:
        k = pr["k"]
        A(f"s_cmp_eq_u32 s{80+2*k}, 0\ns_cbranch_scc1 L_end")
        if pr.get("wave") is not None: A(f"s_cmp_lg_u32 s74, {pr['wave']}\ns_cbranch_scc1 L_end")
        if pr.get("wg") is not None: A(f"s_cmp_lg_u32 s2, {pr['wg']}\ns_cbranch_scc1 L_end")
        A(f"""s_sub_u32 s50, s{80+2*k}, s80
        s_mul_i32 s50, s50, {pr['K']}
        s_add_u32 s50, s50, {pr.get('base', 4000)}
        s_min_u32 s50, s50, 100000
        L_probe:
        s_memrealtime s[52:53]
        s_waitcnt lgkmcnt(0)
        s_sub_u32 s52, s52, s80
        s_cmp_lt_u32 s52, s50
        s_cbranch_scc1 L_probe""")
    A("L_end:\ns_endpgm")
    A(f"""L_fallback:
    s_waitcnt lgkmcnt(0)
    s_mov_b64 exec, -1
    v_lshlrev_b32 v2, 2, v0""")
    g.srd(36, 16, 3584); g.srd(48, 18, 3584); g.srd(56, 20, 3584)
    for k, srd in enumerate((36, 48, 56)):
        for i in range(14): A(f"buffer_load_dword v{48+14*k+i}, v2, s[{srd}:{srd+3}], 0 offen offset:{i*256}")
    A("v_mov_b32 v90, 0\nglobal_load_ushort v90, v90, s[22:23]")
    A(f"v_mov_b32 v92, {f32(K1)}\nv_mov_b32 v93, {f32(K0)}\ns_waitcnt vmcnt(0)")
    for k in range(42):
        A(f"v_lshlrev_b32 v{104+2*k}, 16, v{48+k}\nv_and_b32 v{105+2*k}, 0xffff0000, v{48+k}")
    A("v_lshlrev_b32 v90, 16, v90")
    for q in range(8):
        A(f"v_lshlrev_b32 v{48+q}, 16, v{24+q//2}" if q % 2 == 0 else f"v_and_b32 v{48+q}, 0xffff0000, v{24+q//2}")
    A("s_mov_b32 s54, 0")
    A(f"""L_fbq:
    v_cmp_le_u32 vcc, {128*NT*4}, v16
    s_and_b32 s73, vcc_hi, 0x00ffffff
    s_mov_b32 s72, vcc_lo
    L_fbl:
    s_cmp_eq_u64 s[72:73], 0
    s_cbranch_scc1 L_fbn
    s_ff1_i32_b64 s53, s[72:73]
    s_bitset0_b64 s[72:73], s53
    v_readlane_b32 s60, v48, s53
    v_mov_b32 v94, 0
    v_mov_b32 v95, 0""")
    for i in range(14):
        A(f"""v_pk_fma_f32 v[96:97], {P(104+2*i)}, s[60:61], {P(132+2*i)} op_sel_hi:[1,0,1]
        v_pk_mul_f32 v[98:99], v[96:97], v[96:97]
        v_pk_fma_f32 v[98:99], v[98:99], v[92:93], v[92:93] op_sel:[0,0,1] op_sel_hi:[1,0,1]
        v_pk_mul_f32 v[98:99], v[98:99], v[96:97]
        v_exp_f32 v98, v98
        v_exp_f32 v99, v99
        v_pk_mul_f32 v[96:97], v[96:97], {P(160+2*i)}
        v_pk_add_f32 v[98:99], v[98:99], 1.0 op_sel_hi:[1,0]
        v_rcp_f32 v98, v98
        v_rcp_f32 v99, v99
        s_nop 0
        v_pk_fma_f32 v[94:95], v[96:97], v[98:99], v[94:95]""")
    A("v_add_f32 v94, v94, v95")
    g.wave_reduce("v_add_f32", ["v94"])
    A(f"""v_add_f32 v94, v94, v90
    s_mov_b32 m0, s53
    v_readlane_b32 s60, v94, 63
    s_nop 3
    v_writelane_b32 v40, s60, m0
    s_branch L_fbl
    L_fbn:""")
    for base in (16, 48, 40):
        A(f"v_mov_b32 v1, v{base}")
        for q in range(7): A(f"v_mov_b32 v{base+q}, v{base+q+1}")
        A(f"v_mov_b32 v{base+7}, v1")
    A(f"""s_add_u32 s54, s54, 1
    s_cmp_lt_u32 s54, 8
    s_cbranch_scc1 L_fbq
    s_mov_b32 exec_hi, 0x00ffffff
    s_branch L_fbret
    L_code_end:""")
    A(f""".section .rodata,"a"
    .p2align 6
    .amdhsa_kernel {KN}
    .amdhsa_next_free_vgpr 256
    .amdhsa_next_free_sgpr 102
    .amdhsa_accum_offset 256
    .amdhsa_group_segment_fixed_size 0
    .amdhsa_kernarg_size 104
    .amdhsa_user_sgpr_count 2
    .amdhsa_user_sgpr_kernarg_segment_ptr 1
    .amdhsa_system_sgpr_workgroup_id_x 1
    .amdhsa_float_denorm_mode_32 3
    .end_amdhsa_kernel""")
    txt = "\n".join(g.L) + "\n"
    import hazard
    txt = hazard.autofix(txt, opt.get("verbose"))
    if opt.get("nont"): txt = txt.replace(" nt", "")
    if opt.get("wsoff"):
        txt = txt.replace("s_mov_b32 s44, s28\ns_mov_b32 s45, s29\n", "s_add_u32 s44, s28, %d\ns_addc_u32 s45, s29, 0\n" % opt["wsoff"])
        txt = txt.replace("s_load_dword s70, s[28:29], 0\n", "s_add_u32 s72, s28, %d\ns_addc_u32 s73, s29, 0\ns_load_dword s70, s[72:73], 0\n" % opt["wsoff"])
    if opt.get("plainp"):
        txt = txt.replace("s59 offen sc1\n", "s59 offen\n").replace("v3, s[44:47], s59 offen offset:1024 sc1", "v3, s[44:47], s59 offen offset:1024").replace("v251, s[44:47], s59 offen\n", "v251, s[44:47], s59 offen sc1\n")
        txt = txt.replace("s_mov_b32 s52, 0xff\ns_mov_b32 s78, %d" % PB, "s_mov_b32 s52, 0xff\ns_mov_b32 s78, 0")
    if opt.get("nofb"): txt = txt.replace("s_cbranch_vccnz L_fallback\n", "")
    if opt.get("nosc1"): txt = txt.replace(" sc1", "")
    if opt.get("sc1nt"): txt = txt.replace(" sc1", " sc1 nt")
    if opt.get("stamps") or opt.get("probe"):
        txt = txt.replace("s_and_b32 s30, s2, 7\n", "s_and_b32 s30, s2, 7\ns_mov_b32 s74, s3\n" + "".join(f"s_mov_b32 s{82+2*k}, 0\n" for k in range(8)), 1)
    return txt

if __name__ == "__main__":
    import hazard
    out = sys.argv[1] if len(sys.argv) > 1 else "k.s"
    opt = eval("dict(%s)" % (sys.argv[2] if len(sys.argv) > 2 else ""))
    t = gen(**opt)
    open(out, "w").write(t)
    for b in hazard.check(t): print("HAZARD", b)
```

```python
import math, struct, sys, re
import hazard
KN = "sequential_preLN__sliding_block_cached__mixer_token_mlp__decode_kernel"

def f32(x): return "0x%08x" % struct.unpack("<I", struct.pack("<f", x))[0]
P = lambda r: f"v[{r}:{r+1}]"
Q4 = lambda r: f"v[{r}:{r+3}]"

WS_E, WS_HI, WS_T, WS_S, WS_P, WS_Q, WS_STAMP, WS_SIZE = 0, 0x2000, 0x8000, 0x40000, 0xC0000, 0x100000, 0x200000, 0x400000
NM = 22
KM, KX = NM * 1024, 4 * NM * 1024
L_WQ, L_XS = KX, KX + 57344
L_P, L_Q, L_TS, L_FL, L_O = 155648, 159744, 160768, 160896, 161024
L_ST = L_Q
L_H, L_TPOS, L_TNEG = 16384, 0, 65536
OP, HP, QP = 80, 2048, 528
F_KISS, F_Q, F_P, F_T, F_QK, F_FIN, F_WQ, F_TOK, F_TAG, F_MODE, F_OUT = [4 * i for i in range(11)]
CONS_S = 1
NT = 24
ELO = 132 - NT
LOG2E = math.log2(math.e)
K0 = -2.0 * math.sqrt(2.0 / math.pi) * LOG2E
K1 = K0 * 0.044715

class G:
    def __init__(s, **opt):
        s.L = []; s.o = opt; s.n = 0
    def A(s, x):
        for l in x.strip("\n").split("\n"): s.L.append(l.strip())
    def C(s, x): s.L.append("; " + x)
    def lab(s, p):
        s.n += 1; return f"L_{p}{s.n}"
    def stamp(s, name, wait=False):
        ss = s.o.get("stamps") or ""; k = int(name[1])
        pr = s.o.get("probe")
        if pr: ss = "x0 " + pr["k"]
        if name in ss or (ss and k == 0):
            s.A(f"s_memrealtime s[{80+2*k}:{81+2*k}]" + ("\ns_waitcnt lgkmcnt(0)" if wait else ""))
    def srd(s, d, lo, size):
        if lo is not None: s.A(f"s_mov_b32 s{d}, s{lo}\ns_mov_b32 s{d+1}, s{lo+1}")
        s.A(f"s_mov_b32 s{d+2}, {size}\ns_mov_b32 s{d+3}, 0x20000")
    def lds_inc(s, flag):
        s.A(f"s_mov_b64 exec, 1\nds_add_u32 v255, v254 offset:{flag}\ns_mov_b64 exec, -1")
    def lds_wait(s, flag, val, sleep=1):
        l, d = s.lab("spin"), s.lab("spind")
        s.A(f"""s_mov_b32 s78, 0x40000
        {l}:
        ds_read_b32 v1, v255 offset:{flag}
        s_waitcnt lgkmcnt(0)
        v_readfirstlane_b32 s79, v1
        s_cmp_ge_u32 s79, {val}
        s_cbranch_scc1 {d}
        s_sleep {sleep}
        s_sub_u32 s78, s78, 1
        s_cbranch_scc0 {l}
        {d}:""")
    def umax(s, dst, regs):
        r = list(regs)
        s.A(f"v_max3_u32 {dst}, v{r[0]}, v{r[1]}, v{r[2]}"); r = r[3:]
        while len(r) >= 2:
            s.A(f"v_max3_u32 {dst}, {dst}, v{r[0]}, v{r[1]}"); r = r[2:]
        if r: s.A(f"v_max_u32 {dst}, {dst}, v{r[0]}")
    def tagchk(s, dst, regs, tag, t, byte=True):
        r = list(regs)
        s.A(f"v_bitop3_b32 {dst}, v{r[0]}, v{r[1]}, {tag} bitop3:0x7e"); r = r[2:]
        while r:
            if len(r) >= 4:
                s.A(f"v_bitop3_b32 {t[0]}, v{r[0]}, v{r[1]}, {tag} bitop3:0x7e")
                s.A(f"v_bitop3_b32 {t[1]}, v{r[2]}, v{r[3]}, {tag} bitop3:0x7e")
                s.A(f"v_or3_b32 {dst}, {dst}, {t[0]}, {t[1]}"); r = r[4:]
            else:
                s.A(f"v_bitop3_b32 {dst}, {dst}, v{r[0]}, {tag} bitop3:0xf6"); r = r[1:]
        s.A(f"v_cmp_ne_u32_sdwa vcc, {dst}, 0 src0_sel:BYTE_0 src1_sel:DWORD" if byte else f"v_cmp_ne_u32 vcc, 0, {dst}")
    def wave_reduce(s, op, vs):
        for m in ("row_ror:8 row_mask:0xf", "row_ror:4 row_mask:0xf", "row_ror:2 row_mask:0xf", "row_ror:1 row_mask:0xf",
                  "row_bcast:15 row_mask:0xa", "row_bcast:31 row_mask:0xc"):
            for v in vs: s.A(f"{op}_dpp {v}, {v}, {v} {m} bank_mask:0xf")
    def transpose_pair(s, src, dst, t, pitch=4):
        for q in range(4):
            a, b = src + 8 * t + q, src + 8 * t + 4 + q
            s.A(f"v_perm_b32 v{dst + pitch*2*q + t}, v{b}, v{a}, s76")
            s.A(f"v_perm_b32 v{dst + pitch*(2*q+1) + t}, v{b}, v{a}, s77")

def consumer_prep(g, wi, lab):
    g.A(f"""s_mul_i32 s65, s31, 896
    v_lshl_add_u32 v247, v0, 3, s65
    v_lshl_add_u32 v248, v0, 2, s65
    v_lshl_add_u32 v251, v0, 1, s65
    v_lshlrev_b32 v244, 4, v0
    s_cmp_lg_u32 s75, {CONS_S}
    s_cbranch_scc1 {lab}
    global_load_dwordx2 v[240:241], v247, s[4:5]
    global_load_dword v242, v248, s[4:5] offset:512
    global_load_ushort v243, v251, s[4:5] offset:768
    s_lshl_b32 s64, s31, 3
    s_add_u32 s64, s64, {wi}
    s_lshl_b32 s64, s64, 12
    s_add_u32 s64, s64, {WS_P}
    s_mul_i32 s66, {wi}, {HP}
    v_add_u32 v246, {L_H}, v244
    v_add_u32 v245, s66, v246
    v_mov_b32 v249, 0x00003f80
    v_mov_b32 v250, 0x3f800000
    {lab}:""")

def k_wave(g, opt):
    A = g.A
    PB = opt.get("pollbound", 0x4000)
    KTHR = opt.get("kthr", 12); WOLATE = opt.get("wolate", 0)
    RAW = 72
    g.C("================= waves 0-3: K stream (LDS-DMA) + wo stream, scores, softmax, output projection")
    A(f"""v_lshrrev_b32 v1, 5, v0
    v_and_b32 v2, 31, v0
    v_xor_b32 v2, v2, v1
    v_lshlrev_b32 v2, 4, v2
    v_lshl_add_u32 v240, v1, 9, v2
    s_lshl_b32 s51, s32, 4
    s_add_u32 s51, s51, s3
    s_lshl_b32 s51, s51, 12
    s_add_u32 s51, s51, s34
    s_lshl_b32 s53, s3, 14
    s_add_u32 s53, s53, {KX}
    s_mov_b32 s38, 0x8000000
    s_mov_b32 s39, 0x20000
    s_setprio 2""")
    wl = [(cg, h, i) for cg in range(2) for h in range(2) for i in range(8)]
    cnt = [0]
    def thr():
        if cnt[0] > KTHR: A(f"s_waitcnt vmcnt({KTHR})")
        cnt[0] += 1
    def wo_load(n):
        cg, h, i = wl[n]
        if i % 4 == 0: A(f"s_add_u32 s56, s54, {h*256*896 + i*896}")
        cnt[0] += 1
        A(f"buffer_load_dwordx4 {Q4(RAW + 4*n)}, v{248+cg}, s[40:43], s56 offen offset:{(i%4)*896} nt")
    NWI = 32 - WOLATE
    NWX = NWI * 16 // (16 + NM)
    PRE = opt.get("pre", 2)
    def xload(x):
        o = (9 * 64 + 32 * (x & 1) + 2 * (x >> 1)) * 512
        A(f"s_cmp_eq_u32 s32, 0\ns_cbranch_scc1 L_xs{x}")
        A(f"s_add_u32 m0, s53, {x*1024}\ns_add_u32 s57, s51, {o}"); thr()
        A(f"buffer_load_dwordx4 v{240+x}, s[36:39], s57 offen nt lds")
        A(f"s_cmp_eq_u32 s32, 3\ns_cbranch_scc1 L_xs{x}")
        A(f"s_add_u32 m0, s53, {8192 + x*1024}\ns_add_u32 s57, s51, {o + 32768}"); thr()
        A(f"buffer_load_dwordx4 v{240+x}, s[36:39], s57 offen nt lds")
        A(f"L_xs{x}:")
    g.C("extra tiles: none for s == 0 (it streams wq instead), one for s == 3, two otherwise")
    for j in range(1, PRE): A(f"v_xor_b32 v{240+j}, {32*j}, v240")
    A("s_waitcnt lgkmcnt(0)")
    g.stamp("a1")
    for x in range(PRE): xload(x)
    for j in range(max(1, PRE), 8): A(f"v_xor_b32 v{240+j}, {32*j}, v240")
    A(f"""v_and_b32 v2, 7, v0
    v_lshlrev_b32 v2, 4, v2
    v_lshrrev_b32 v1, 3, v0
    v_mul_u32_u24 v3, {8*896}, v1
    v_add_u32 v248, v3, v2
    s_cmp_eq_u32 s3, 3
    s_cselect_b32 s50, 0x40000000, 512
    v_add_u32 v249, s50, v248
    s_lshl_b32 s54, s30, 3
    s_add_u32 s54, s54, s32
    s_mul_i32 s54, s54, {64*896}
    s_lshl_b32 s56, s3, 7
    s_add_u32 s54, s54, s56""")
    g.srd(40, None, 4096 * 896)
    A("s_barrier\ns_cmp_lg_u32 s32, 0\ns_cbranch_scc1 L_xgo")
    g.lds_wait(F_WQ, 1, 2)
    A("L_xgo:")
    nwo = 0
    for x in range(PRE, 8):
        while nwo < NWX * (x + 1) // 8: wo_load(nwo); nwo += 1
        xload(x)
    g.stamp("a6")
    A(f"""s_lshl_b32 s57, s3, 2
    s_add_u32 s57, s57, s32
    s_lshl_b32 s57, s57, 10
    s_add_u32 s57, s57, s34
    s_mul_i32 s52, s3, {KM}
    s_mov_b32 s60, s52
    s_movk_i32 s72, 1024
    s_movk_i32 s73, 16384""")
    def qloads():
        for i in range(4): A(f"buffer_load_dwordx4 {Q4(8+4*i)}, v250, s[44:47], s58 offen offset:{i*1024} sc1")
    def qtake(wait):
        g.C("wave 3: check the gathered q words, sum the two k halves, hand q and the store mode to the workgroup")
        A("s_cmp_lg_u32 s3, 3\ns_cbranch_scc1 L_qdone")
        g.lds_wait(F_TOK, 1)
        A(f"""ds_read_b32 v25, v255 offset:{F_TAG}
        s_mov_b32 s78, {PB}
        v_lshlrev_b32 v28, 3, v0
        v_add_u32 v28, {L_Q}, v28
        s_getreg_b32 s68, hwreg(HW_REG_XCC_ID, 0, 4)
        s_lshl_b32 s68, s68, 28
        s_waitcnt lgkmcnt(0) vmcnt({wait})
        L_qchk:""")
        g.tagchk("v26", range(8, 24), "v25", ("v1", "v27"))
        A("s_cbranch_vccz L_qok\ns_mov_b64 exec, vcc")
        qloads()
        A(f"""s_waitcnt vmcnt(0)
        s_sub_u32 s78, s78, 1
        s_cbranch_scc0 L_qchk
        L_qok:
        s_mov_b64 exec, -1
        v_and_b32 v25, 0x0fffffff, v25
        v_or_b32 v25, s68, v25""")
        for r in range(8, 16, 2): A(f"v_pk_add_f32 {P(r)}, {P(r)}, {P(r+8)}")
        for r in range(4): A(f"v_cvt_pk_bf16_f32 v{8+r}, v{8+2*r}, v{9+2*r}")
        A(f"""ds_write2st64_b64 v28, v[8:9], v[10:11] offset0:0 offset1:1
        v_cmp_ne_u32 vcc, v25, v24
        s_cmp_eq_u64 vcc, 0
        s_cselect_b32 s69, {0 if opt.get('forceslow') else 1}, 0
        v_mov_b32 v1, s69
        ds_write_b32 v255, v1 offset:{F_MODE}""")
        g.lds_inc(F_Q)
        A("L_qdone:")
    since = -99; sig = False; cnt[0] = 99
    QAT = opt.get("qat", 16)
    for n in range(NM):
        if n == QAT:
            A(f"""s_cmp_lg_u32 s3, 3
            s_cbranch_scc1 L_noq
            s_lshl_b32 s58, s35, 12
            s_add_u32 s58, s58, {WS_Q}
            s_lshl_b32 s59, s30, 3
            s_add_u32 s59, s59, s31
            s_lshl_b32 s59, s59, 4
            s_add_u32 s59, s59, {WS_HI}""")
            qloads(); A("buffer_load_dword v24, v251, s[44:47], s59 offen sc1\nL_noq:"); since = 0
        A("s_mov_b32 m0, s60")
        thr()
        if since >= KTHR and not sig:
            qtake(63); sig = True
        A(f"buffer_load_dwordx4 v{240+n%8}, s[36:39], s57 offen nt lds"); since += 1
        if n < NM - 1: A("s_add_u32 s57, s57, s73\ns_add_u32 s60, s60, s72")
        if n == 0: A("v_lshlrev_b32 v250, 4, v0\nv_and_b32 v251, 3, v0\nv_lshlrev_b32 v251, 2, v251")
        while nwo < NWX + (NWI - NWX) * (n + 1) // (NM - 1) and nwo < NWI: wo_load(nwo); nwo += 1; since += 1
    assert nwo == NWI
    g.lds_inc(F_KISS)
    while nwo < 32: wo_load(nwo); nwo += 1; since += 1
    if not sig: qtake(since)
    g.stamp("k1")
    g.C("---- scores")
    M11 = (1 << 11) - 1
    mk = lambda m: m | (m << 20)
    A(f"""v_and_b32 v1, 15, v0
    v_lshrrev_b32 v2, 4, v0
    v_xor_b32 v3, v1, v2
    v_lshlrev_b32 v3, 4, v3
    v_lshl_add_u32 v3, v1, 9, v3
    v_add_u32 v250, s53, v3
    v_xor_b32 v251, 64, v250
    v_xor_b32 v252, 128, v250
    v_xor_b32 v253, 192, v250
    v_and_b32 v3, 1, v0
    v_lshlrev_b32 v249, 9, v3
    v_lshl_add_u32 v249, v2, 4, v249
    v_add_u32 v249, {L_Q}, v249
    v_mul_u32_u24 v3, 320, v3
    v_lshl_add_u32 v3, v2, 4, v3
    v_add_u32 v248, s52, v3
    s_lshl_b32 s58, s35, 13
    s_add_u32 s58, s58, {WS_S}
    s_lshl_b32 s59, s3, 10
    s_add_u32 s59, s59, s58
    s_sub_u32 s61, s52, s53
    s_mov_b32 s62, {mk(M11 | 0xff000) & 0xffffffff}
    s_mov_b32 s63, {mk(M11 | 0xff000) >> 32}
    s_cmp_eq_u32 s32, 3
    s_cselect_b32 s62, {mk(M11 | 0xf000) & 0xffffffff}, s62
    s_cselect_b32 s63, {mk(M11 | 0xf000) >> 32}, s63
    s_cmp_eq_u32 s32, 0
    s_cselect_b32 s62, {mk(M11) & 0xffffffff}, s62
    s_cselect_b32 s63, {mk(M11) >> 32}, s63
    s_mul_i32 s66, s32, 11
    s_lshl_b32 s67, s32, 3
    s_add_u32 s67, s67, 24""")
    g.lds_wait(F_Q, 1)
    A(f"ds_read_b64 v[2:3], v255 offset:{F_TAG}")
    for i in range(8): A(f"ds_read_b128 {Q4(8+4*i)}, v249 offset:{i*64}")
    DREG = [232, 236, 240, 244, 4]; SOFF = [12, 16, 0, 4, 8]
    def kread(t, buf):
        o = t if t < 2 else t - 2
        for i in range(8): A(f"ds_read_b128 {Q4(buf+4*i)}, v{250+i%4} offset:{o*8192 + (i//4)*256}")
    def kmma(t, buf, more):
        d = DREG[t]
        for i in range(8):
            A(f"s_waitcnt lgkmcnt({7 - i + more})")
            A(f"v_mfma_f32_16x16x32_bf16 {Q4(d)}, {Q4(buf+4*i)}, {Q4(8+4*i)}, " + ("0" if i == 0 else Q4(d)))
    bufs = [40, 200]
    A("s_waitcnt lgkmcnt(0)\nv_readfirstlane_b32 s70, v2\nv_readfirstlane_b32 s69, v3")
    g.C("tiles: the two extra tiles (landed long ago), then the three interleaved ones")
    kread(0, bufs[0]); kread(1, bufs[1])
    A(f"""v_cmp_lt_u32 vcc, 19, v0
    v_subrev_u32 v3, 20, v0
    v_min_u32 v3, v3, v0
    v_cndmask_b32 v1, 0, 1, vcc
    v_cmp_lt_u32 vcc, 11, v3
    v_mov_b32 v249, s66
    v_lshl_add_u32 v3, v1, 8, v3
    v_mov_b32 v1, s67
    v_cndmask_b32 v249, v249, v1, vcc
    v_add_lshl_u32 v249, v249, v3, 4
    v_lshl_add_u32 v3, v0, 4, s52""")
    kmma(0, bufs[0], 8)
    for i in range(4): A(f"v_add_u32 v{250+i}, s61, v{250+i}")
    A(f"s_waitcnt vmcnt({WOLATE + 14})")
    kread(2, bufs[0]); kmma(1, bufs[1], 8)
    A(f"s_waitcnt vmcnt({WOLATE + 6})")
    kread(3, bufs[1]); kmma(2, bufs[0], 8)
    kmma(3, bufs[1], 0)
    A(f"s_waitcnt vmcnt({WOLATE})")
    kread(4, bufs[0]); kmma(4, bufs[0], 0)
    A("s_mov_b32 exec_lo, 0x00030003\ns_mov_b32 exec_hi, 0x00030003")
    for t in range(5): A(f"ds_write_b128 v248, {Q4(DREG[t])} offset:{SOFF[t]*16}")
    A("s_mov_b64 exec, s[62:63]\nds_read_b128 v[4:7], v3\ns_cmp_eq_u32 s69, 0\ns_waitcnt lgkmcnt(0)")
    for r in range(4, 8): A(f"v_bfi_b32 v{r}, s71, v2, v{r}")
    A(f"""s_cbranch_scc1 L_sslow
    buffer_store_dwordx4 v[4:7], v249, s[44:47], s59 offen
    s_branch L_ssd
    L_sslow:
    buffer_store_dwordx4 v[4:7], v249, s[44:47], s59 offen sc1
    L_ssd:""")
    g.lds_inc(F_QK)
    g.stamp("k4")
    g.C("---- transpose wo in registers")
    for u in range(4):
        if u == (32 - WOLATE) // 8: A("s_waitcnt vmcnt(1)")
        for t in range(4): g.transpose_pair(RAW + 32 * u, 8 + 64 * (u // 2) + 4 * (u % 2), t, 8)
    A("s_cmp_ge_u32 s3, 2\ns_cbranch_scc1 L_k23")
    g.C("---- waves 0,1: softmax of head w over the 1024 gathered scores")
    S0 = 200
    A(f"""v_lshlrev_b32 v2, 4, v0
    s_lshl_b32 s59, s3, 12
    s_add_u32 s59, s59, s58
    s_mov_b32 s78, {PB}""")
    def sloads():
        for i in range(4): A(f"buffer_load_dwordx4 {Q4(S0+4*i)}, v2, s[44:47], s59 offen offset:{i*1024} sc1")
    sloads()
    A(f"""v_mul_u32_u24 v3, 187, v0
    v_lshrrev_b32 v3, 11, v3
    v_mul_u32_u24 v4, 11, v3
    v_sub_u32 v4, v0, v4
    v_cmp_lt_u32 vcc, 43, v0
    v_and_b32 v5, 3, v0
    v_lshrrev_b32 v6, 2, v0
    v_cndmask_b32 v3, v3, v5, vcc
    v_cndmask_b32 v4, v4, v6, vcc
    v_lshlrev_b32 v3, 4, v3
    v_lshrrev_b32 v5, 2, v4
    v_lshl_add_u32 v3, v5, 8, v3
    v_and_b32 v4, 3, v4
    v_lshl_add_u32 v3, v4, 2, v3
    s_lshl_b32 s60, s3, 6
    s_add_u32 s60, s60, {L_P}
    v_add_u32 v3, s60, v3
    L_spoll:
    s_waitcnt vmcnt(0)""")
    g.tagchk("v4", range(S0, S0 + 16), "s70", ("v1", "v5"))
    A(f"s_cbranch_vccz L_sok\ns_mov_b64 exec, vcc\ns_sleep {opt.get('ssleep', 2)}")
    sloads()
    A(f"""s_sub_u32 s78, s78, 1
    s_cbranch_scc0 L_spoll
    s_waitcnt vmcnt(0)
    L_sok:
    s_mov_b64 exec, -1""")
    g.stamp("k5")
    A(f"v_max3_f32 v4, v{S0}, v{S0+1}, v{S0+2}")
    for r in range(S0 + 3, S0 + 15, 2): A(f"v_max3_f32 v4, v4, v{r}, v{r+1}")
    A(f"v_max_f32 v4, v4, v{S0+15}")
    g.wave_reduce("v_max_f32", ["v4"])
    A(f"""v_mov_b32 v5, {f32(LOG2E/16)}
    v_readlane_b32 s60, v4, 63
    v_mul_f32 v4, s60, v5""")
    for r in range(S0, S0 + 16): A(f"v_fma_f32 v{r}, v{r}, v5, -v4")
    for r in range(S0, S0 + 16): A(f"v_exp_f32 v{r}, v{r}")
    A(f"v_pk_add_f32 v[6:7], {P(S0)}, {P(S0+2)}")
    for r in range(S0 + 4, S0 + 16, 2): A(f"v_pk_add_f32 v[6:7], v[6:7], {P(r)}")
    A("v_add_f32 v4, v6, v7")
    g.wave_reduce("v_add_f32", ["v4"])
    A("v_rcp_f32 v4, v4\nv_readlane_b32 s60, v4, 63")
    for r in range(S0, S0 + 16, 2): A(f"v_pk_mul_f32 {P(r)}, {P(r)}, s[60:61] op_sel_hi:[1,0]")
    for i in range(4):
        r = S0 + 4 * i
        A(f"v_cvt_pk_bf16_f32 v{r}, v{r}, v{r+2}\nv_cvt_pk_bf16_f32 v{r+1}, v{r+1}, v{r+3}")
        A(f"ds_write_b32 v3, v{r} offset:{i*1024}\nds_write_b32 v3, v{r+1} offset:{i*1024+128}")
    g.lds_inc(F_P)
    A("s_branch L_kjoin")
    g.C("---- waves 2,3 of a finishing workgroup: gather the mixer table into LDS")
    A(f"""L_k23:
    s_cmp_lg_u32 s75, {CONS_S}
    s_cbranch_scc1 L_kjoin
    s_and_b32 s62, s3, 1
    v_lshlrev_b32 v2, 4, v0
    s_lshl_b32 s59, s62, 13
    s_add_u32 s59, s59, {WS_T}
    s_add_u32 s60, s59, 4096
    s_lshl_b32 s62, s62, 16
    v_mul_u32_u24 v3, 12, v0
    v_add_u32 v3, s62, v3
    s_mov_b32 s78, {PB}
    L_tpoll:""")
    for i in range(8): A(f"buffer_load_dwordx4 {Q4(200+4*i)}, v2, s[44:47], s{59+i//4} offen offset:{(i%4)*1024} sc1")
    A("s_waitcnt vmcnt(0)")
    g.tagchk("v4", range(203, 232, 4), "s70", ("v1", "v5"), byte=False)
    A(f"""s_cbranch_vccz L_tok
    s_mov_b64 exec, vcc
    s_sleep 4
    s_sub_u32 s78, s78, 1
    s_cbranch_scc0 L_tpoll
    L_tok:
    s_mov_b64 exec, -1""")
    g.lds_wait(F_QK, 4)
    for i in range(8):
        for k in range(3): A(f"ds_write_b32 v3, v{200+4*i+k} offset:{L_TPOS + i*768 + 4*k}")
    g.stamp("k5")
    g.C("---- output projection: rows of A = 4 partial o x 2 k halves x 2 sparse selections, summed afterwards")
    ACC = 136
    A(f"""L_kjoin:
    v_and_b32 v2, 15, v0
    v_mul_u32_u24 v2, {OP}, v2
    v_and_b32 v3, 48, v0
    v_add_u32 v2, v2, v3
    v_add_u32 v2, {L_O}, v2
    v_bfe_u32 v3, v0, 1, 1
    v_mul_u32_u24 v3, 0xaaaa, v3
    v_add_u32 v236, 0x4444, v3
    v_and_b32 v3, 7, v0
    v_lshlrev_b32 v3, 3, v3
    v_bfe_u32 v4, v0, 3, 1
    v_lshl_add_u32 v3, v4, 2, v3
    v_lshrrev_b32 v4, 4, v0
    v_add_u32 v3, v3, v4
    s_lshl_b32 s60, s3, 6
    v_add_u32 v6, s60, v3
    v_lshrrev_b32 v5, 2, v6
    v_lshlrev_b32 v5, 4, v5
    v_lshl_add_u32 v5, v4, 1, v5
    v_add_u32 v4, {L_ST}, v5
    v_lshrrev_b32 v5, 1, v6
    v_lshlrev_b32 v5, 4, v5
    v_and_b32 v6, 1, v6
    v_lshl_add_u32 v5, v6, 1, v5
    v_add_u32 v5, {L_ST + 8}, v5
    s_cmp_lg_u32 s3, 2
    s_cbranch_scc1 L_st2
    v_lshlrev_b32 v5, 4, v3
    v_add_u32 v5, {L_ST + 14}, v5
    L_st2:
    v_lshlrev_b32 v6, 4, v0
    v_add_u32 v6, {L_ST}, v6
    s_lshl_b32 s59, s35, 2
    s_add_u32 s59, s59, s32
    s_lshl_b32 s59, s59, 10
    s_add_u32 s59, s59, {WS_P}
    s_cmp_lg_u32 s3, 3
    s_cbranch_scc1 L_st3""")
    g.lds_wait(F_QK, 4)
    A("v_mov_b32 v7, s70\nds_write_b16 v6, v7 offset:12\nL_st3:")
    for r in range(ACC, ACC + 64): A(f"v_mov_b32 v{r}, 0")
    consumer_prep(g, "s3", "L_kprep")
    A("s_cmp_eq_u32 s3, 3\ns_waitcnt vmcnt(0) lgkmcnt(0)")
    g.stamp("k6", True)
    A("s_barrier\nds_read_b128 v[232:235], v2")
    def omma(cg, j):
        a = ACC + 32 * cg + 4 * j; b = 8 + 64 * cg + 8 * j
        return f"v_smfmac_f32_16x16x64_bf16 {Q4(a)}, v[232:235], v[{b}:{b+7}], v236"
    def opk(cg, k):
        a = ACC + 32 * cg + 4 * k
        return f"v_pk_add_f32 {P(a)}, {P(a)}, {P(a+2)}"
    def oadd(cg, k):
        a = ACC + 32 * cg + 4 * k; r = 200 + 4 * cg + k % 4
        if k < 4: return f"v_add_f32_dpp v{r}, v{a+1}, v{a} row_ror:8 row_mask:0xf bank_mask:0x3"
        return f"v_add_f32_dpp v{r}, v{a}, v{a+1} row_ror:8 row_mask:0xf bank_mask:0xc"
    def ochain(cgs):
        JO = [0, 2, 4, 6, 1, 3, 5, 7]
        steps = [(cg, j) for j in JO for cg in cgs]
        N = len(steps); L1, L2 = opt.get("olag", (4, 6))
        A("s_waitcnt lgkmcnt(0)")
        for n in range(N + L2):
            if n < N: A(omma(*steps[n]))
            if 0 <= n - L1 < N: A(opk(*steps[n - L1]))
            if 0 <= n - L2 < N: A(oadd(*steps[n - L2]))
            if n - L2 == N // 2 + 1:
                for cg in cgs: A(f"v_permlane32_swap_b32 v{200+4*cg}, v{202+4*cg}")
                for cg in cgs: A(f"v_add_f32 v{200+4*cg}, v{200+4*cg}, v{202+4*cg}")
        for cg in cgs: A(f"v_permlane32_swap_b32 v{201+4*cg}, v{203+4*cg}")
        for cg in cgs: A(f"v_add_f32 v{201+4*cg}, v{201+4*cg}, v{203+4*cg}")
        for cg in cgs: A(f"v_permlane16_swap_b32 v{200+4*cg}, v{201+4*cg}")
        for cg in cgs: A(f"v_add_f32 v{200+4*cg}, v{200+4*cg}, v{201+4*cg}")
        A(f"v_cvt_pk_bf16_f32 v200, v200, v{200+4*cgs[-1]}\nds_write_b16 v4, v200")
        if len(cgs) == 2: A("ds_write_b16_d16_hi v5, v200")
    A("s_cbranch_scc1 L_o3")
    ochain([0, 1])
    A(f"""L_kdone:
    s_mov_b64 exec, 1
    ds_add_rtn_u32 v7, v255, v254 offset:{F_OUT}
    s_mov_b64 exec, -1
    ds_read_b128 v[208:211], v6
    s_waitcnt lgkmcnt(1)
    v_readfirstlane_b32 s60, v7
    s_cmp_lg_u32 s60, 3
    s_cbranch_scc1 L_knost
    s_waitcnt lgkmcnt(0)
    buffer_store_dwordx4 v[208:211], v244, s[44:47], s59 offen sc1
    L_knost:""")
    g.stamp("k7")
    A(f"s_cmp_eq_u32 s75, {CONS_S}\ns_cbranch_scc1 L_gather\ns_branch L_fin\nL_o3:")
    ochain([0])
    A("s_branch L_kdone")

def tloop(g, opt, ng, tag):
    A = g.A
    g.C(f"mixer table slice: g(t) = sum_f w2[f] gelu(w1[f] t + b1[f]) for {NT} consecutive bf16 values t, {128*ng} hidden units per wave")
    A(f"""s_and_b32 s60, s2, 127
    s_mul_i32 s60, s60, {NT}
    s_add_u32 s60, s60, {ELO*128}
    s_lshr_b32 s61, s2, 7
    s_lshl_b32 s61, s61, 15
    s_add_u32 s60, s60, s61
    s_lshl_b32 s60, s60, 16
    s_add_u32 s61, s60, {(NT//2) << 16}
    v_mov_b32 v38, {f32(K1)}
    v_mov_b32 v39, {f32(K0)}
    v_and_b32 v4, 15, v0""")
    for r in range(104, 112): A(f"v_mov_b32 v{r}, 0")
    A("s_mov_b32 s62, 0")
    if ng == 4: A("s_waitcnt vmcnt(1)")
    for k in range(3):
        for i in range(ng): A(f"v_lshlrev_b32 v{8+10*k+2*i}, 16, v{144+4*k+i}\nv_and_b32 v{9+10*k+2*i}, 0xffff0000, v{144+4*k+i}")
    A(f".p2align 3\nL_tloop{tag}:")
    CH = [(tt, i) for i in range(ng) for tt in range(2)]
    U = lambda tt, i: 62 + 4 * i + 2 * tt
    Z = lambda tt, i: 82 + 4 * i + 2 * tt
    A("v_cmp_eq_u32_e64 vcc, s62, v4")
    for tt, i in CH: A(f"v_pk_fma_f32 {P(U(tt,i))}, {P(8+2*i)}, s[60:61], {P(18+2*i)} op_sel:[0,{tt},0] op_sel_hi:[1,{tt},1]")
    A("v_cndmask_b32 v5, 0, 1.0, vcc")
    for tt, i in CH: A(f"v_pk_mul_f32 {P(Z(tt,i))}, {P(U(tt,i))}, {P(U(tt,i))}")
    for tt, i in CH: A(f"v_pk_fma_f32 {P(Z(tt,i))}, {P(Z(tt,i))}, v[38:39], v[38:39] op_sel:[0,0,1] op_sel_hi:[1,0,1]")
    for tt, i in CH: A(f"v_pk_mul_f32 {P(Z(tt,i))}, {P(Z(tt,i))}, {P(U(tt,i))}")
    for r in range(82, 82 + 4 * ng): A(f"v_exp_f32 v{r}, v{r}")
    for tt, i in CH: A(f"v_pk_mul_f32 {P(U(tt,i))}, {P(U(tt,i))}, {P(28+2*i)}")
    for tt, i in CH: A(f"v_pk_add_f32 {P(Z(tt,i))}, {P(Z(tt,i))}, 1.0 op_sel_hi:[1,0]")
    for r in range(82, 82 + 4 * ng): A(f"v_rcp_f32 v{r}, v{r}")
    for tt, i in CH:
        if i == 0: A(f"v_pk_mul_f32 {P(112+2*tt)}, {P(U(tt,i))}, {P(Z(tt,i))}")
        else: A(f"v_pk_fma_f32 {P(112+2*tt)}, {P(U(tt,i))}, {P(Z(tt,i))}, {P(112+2*tt)}")
    A(f"""v_add_f32 v112, v112, v113
    v_add_f32 v114, v114, v115
    s_add_u32 s60, s60, 0x10000
    s_add_u32 s61, s61, 0x10000
    v_mfma_f32_16x16x4_f32 v[104:107], v5, v112, v[104:107]
    v_mfma_f32_16x16x4_f32 v[108:111], v5, v114, v[108:111]
    s_add_u32 s62, s62, 1
    s_cmp_lt_u32 s62, {opt.get('titers', NT//2)}
    s_cbranch_scc1 L_tloop{tag}""")

def v_wave(g, opt):
    A = g.A
    PB = opt.get("pollbound", 0x4000)
    VTHR = opt.get("vthr", 6)
    g.C("================= waves 4-6: mixer table, then V stream")
    A(f"""L_vwave:
    s_sub_u32 s3, s3, 4
    v_lshlrev_b32 v2, 4, v0
    v_lshl_add_u32 v2, s3, 10, v2
    s_getpc_b64 s[52:53]
    L_pc:
    s_sub_u32 s52, s52, L_pc-{KN}
    s_subb_u32 s53, s53, 0
    s_mul_i32 s51, s33, 3
    s_add_u32 s51, s51, s3
    s_lshl_b32 s51, s51, 8
    v_and_b32 v3, 1, v0
    v_lshl_add_u32 v3, v3, 7, s51
    v_min_u32 v3, L_code_end-{KN}-4, v3
    s_waitcnt lgkmcnt(0)
    s_load_dword s67, s[22:23], 0
    global_load_dwordx4 v[144:147], v2, s[16:17]
    global_load_dwordx4 v[148:151], v2, s[18:19]
    global_load_dwordx4 v[152:155], v2, s[20:21]
    s_mov_b64 exec, 3
    global_load_dword v161, v3, s[52:53]
    s_mov_b64 exec, -1
    s_barrier""")
    tloop(g, opt, 4, "a")
    g.stamp("v2")
    A("s_branch L_tend")
    g.C("================= wave 7: launch tag, placement word, q projection (s == 0), table, V stream")
    A(f"""L_ctrl:
    s_setprio 3
    s_mov_b32 s3, 3
    v_lshlrev_b32 v2, 2, v0
    v_add_u32 v3, {L_TS}, v2
    v_mov_b32 v4, 0
    ds_write_b32 v3, v4
    v_lshlrev_b32 v12, 4, v0
    v_lshrrev_b32 v1, 4, v0
    v_and_b32 v3, 15, v0
    v_lshlrev_b32 v3, 4, v3
    v_lshlrev_b32 v4, 5, v1
    v_xor_b32 v3, v3, v4
    v_lshl_add_u32 v248, v1, 13, v3
    v_xor_b32 v249, 128, v248
    s_and_b32 s54, s31, 3
    s_lshr_b32 s55, s31, 2
    s_lshl_b32 s58, s30, 2
    s_add_u32 s58, s58, s54
    s_lshl_b32 s58, s58, 8
    s_mul_i32 s56, s55, {224*8192}
    s_add_u32 s58, s58, s56
    s_movk_i32 s57, 4096
    s_movk_i32 s72, 1024
    s_mov_b32 s73, 32768
    s_mov_b32 m0, {L_XS}
    v_lshlrev_b32 v2, 3, v0
    s_waitcnt lgkmcnt(0)
    s_barrier
    s_load_dword s70, s[44:45], {WS_E}
    s_load_dword s67, s[22:23], 0""")
    def tl2():
        for k in range(3): A(f"global_load_dwordx2 {P(144+4*k)}, v2, s[{16+2*k}:{17+2*k}] offset:3072")
    def hello():
        A(f"""s_getreg_b32 s68, hwreg(HW_REG_XCC_ID, 0, 4)
        s_lshl_b32 s68, s68, 28
        s_lshl_b32 s52, s30, 7
        s_add_u32 s52, s52, {WS_HI}
        s_lshl_b32 s53, s33, 2
        s_add_u32 s53, s53, s52
        s_waitcnt lgkmcnt(0)
        s_mul_i32 s70, s70, 1664525
        s_add_u32 s70, s70, 1013904223
        s_and_b32 s69, s70, 0x0fffffff
        s_or_b32 s68, s68, s69
        v_mov_b32 v13, s70
        v_mov_b32 v3, s68
        s_mov_b64 exec, 1
        buffer_store_dword v3, off, s[44:47], s53
        ds_write2_b32 v255, v254, v13 offset0:{F_TOK//4} offset1:{F_TAG//4}
        s_mov_b64 exec, -1""")
    A("s_cmp_lg_u32 s32, 0\ns_cbranch_scc1 L_noqp")
    g.srd(36, 4, 7168); g.srd(40, 10, 448 * 8192)
    for i in range(7):
        if i == 4: A(f"s_mov_b32 m0, {L_XS + 4096}")
        A(f"buffer_load_dwordx4 v12, s[36:39], {'0' if i < 4 else 's57'} offen offset:{(i%4)*1024} lds")
    A(f"s_mov_b32 m0, {L_WQ}")
    for d in range(56):
        if d == 24: hello()
        if d == 50: A("s_waitcnt vmcnt(53)")
        A(f"buffer_load_dwordx4 v{248+(d>>1)%2}, s[40:43], s58 offen nt lds")
        if d < 55: A("s_add_u32 m0, m0, s72\ns_add_u32 s58, s58, s73")
    A("v_and_b32 v15, 31, v0\nv_lshlrev_b32 v15, 2, v15\nbuffer_load_dword v15, v15, s[44:47], s52 offen sc1")
    tl2()
    g.lds_inc(F_WQ)
    A(f"""v_and_b32 v4, 15, v0
    v_lshrrev_b32 v5, 4, v0
    v_mul_u32_u24 v6, 896, v4
    v_lshl_add_u32 v6, v5, 4, v6
    s_mul_i32 s56, s55, 448
    s_sub_u32 s57, {L_XS + 448}, s56
    s_add_u32 s56, s56, {L_XS}
    v_add_u32 v7, s57, v6
    v_add_u32 v6, s56, v6
    v_mov_b32 v1, 0x3f803f80""")
    for r in range(16, 72): A(f"v_mov_b32 v{r}, v1")
    g.stamp("v1")
    A("s_waitcnt vmcnt(60) lgkmcnt(0)\ns_mov_b32 exec_lo, 0x00ff00ff\ns_mov_b32 exec_hi, 0x00ff00ff")
    for i in range(14): A(f"ds_read_b128 {Q4(16+4*i)}, v{6 + i//7} offset:{(i%7)*64}")
    A(f"""s_mov_b64 exec, -1
    v_lshrrev_b32 v14, 2, v4
    v_lshl_add_u32 v14, v5, 3, v14
    v_lshlrev_b32 v14, 8, v14
    v_and_b32 v8, 3, v0
    v_lshl_add_u32 v14, v8, 3, v14
    v_and_b32 v9, 28, v0
    v_lshl_add_u32 v14, v9, 3, v14
    v_add_u32 v240, {L_WQ}, v14""")
    for ct in range(1, 8): A(f"v_xor_b32 v{240+ct}, {32*ct}, v240")
    for i in range(14):
        A(f"s_waitcnt lgkmcnt({13-i})")
        A(f"v_mfma_f32_16x16x32_bf16 v[136:139], {Q4(16+4*i)}, {Q4(16+4*i)}, " + ("0" if i == 0 else "v[136:139]"))
    g.C("LayerNorm moments: row sums from lane n+32, sums of squares from the diagonal of the Gram matrix")
    A(f"""v_add_u32 v9, 32, v4
    v_lshlrev_b32 v9, 2, v9
    v_and_b32 v10, 4, v0
    v_lshl_add_u32 v10, v10, 2, v4
    v_lshlrev_b32 v10, 2, v10
    v_cmp_eq_u32 vcc, 1, v8
    v_cmp_eq_u32 s[60:61], 2, v8
    v_cmp_eq_u32 s[62:63], 3, v8
    v_cndmask_b32 v11, v136, v137, vcc
    v_cndmask_b32 v11, v11, v138, s[60:61]
    v_cndmask_b32 v11, v11, v139, s[62:63]
    ds_bpermute_b32 v9, v9, v136
    ds_bpermute_b32 v10, v10, v11
    v_mul_u32_u24 v6, {QP}, v4
    v_lshl_add_u32 v6, v5, 4, v6
    v_add_u32 v6, {L_XS}, v6
    v_lshrrev_b32 v5, 5, v0
    v_and_b32 v4, 31, v0
    v_lshlrev_b32 v4, 4, v4
    v_mul_u32_u24 v7, {QP}, v5
    v_add_u32 v7, v7, v4
    v_add_u32 v7, {L_XS}, v7
    v_lshl_add_u32 v14, v5, 15, v4
    s_lshl_b32 s50, s30, 12
    s_lshl_b32 s51, s31, 9
    s_add_u32 s50, s50, s51
    s_add_u32 s50, s50, {WS_Q}
    s_add_u32 s51, s50, 0x10000
    s_add_u32 s52, s50, 0x20000
    s_add_u32 s53, s50, 0x30000
    s_waitcnt lgkmcnt(0)
    v_mov_b32 v11, {f32(1/448)}
    v_mul_f32 v9, v9, v11
    v_mul_f32 v10, v10, v11
    v_fma_f32 v10, -v9, v9, v10
    v_max_f32 v10, 0, v10
    v_add_f32 v10, {f32(1e-5)}, v10
    v_rsq_f32 v10, v10
    v_sub_f32 v9, 0, v9""")
    def wread(i):
        b = 72 + 16 * (i % 2); st = i // 2
        if i % 2 == 0: A(f"s_waitcnt vmcnt({4 + 48 - 8*st})")
        for c in range(4):
            ct = 4 * (i % 2) + c
            A(f"ds_read_b64_tr_b16 {P(b+4*c)}, v{240+ct} offset:{st*8192}\nds_read_b64_tr_b16 {P(b+4*c+2)}, v{240+ct} offset:{st*8192+1024}")
    wread(0)
    for i in range(14):
        b = 72 + 16 * (i % 2); st = i // 2
        if i < 13: wread(i + 1)
        for c in range(4):
            A(f"s_waitcnt lgkmcnt({6 - 2*c + (8 if i < 13 else 0)})")
            d = 104 + 16 * (i % 2) + 4 * c
            A(f"v_mfma_f32_16x16x32_bf16 {Q4(d)}, {Q4(b+4*c)}, {Q4(16+4*st)}, " + ("0" if st == 0 else Q4(d)))
    g.C("q = rstd * (x wq - mean * colsum(wq)); column sums come from the all-ones column 8")
    for r in range(104, 136): A(f"v_fmac_f32_dpp v{r}, v{r}, v9 row_newbcast:8 row_mask:0xf bank_mask:0xf")
    A("s_mov_b32 exec_lo, 0x00ff00ff\ns_mov_b32 exec_hi, 0x00ff00ff")
    for c in range(8):
        for r in (104 + 4 * c, 106 + 4 * c): A(f"v_pk_mul_f32 {P(r)}, {P(r)}, v[10:11] op_sel_hi:[1,0]")
        A(f"ds_write_b128 v6, {Q4(104+4*c)} offset:{c*64}")
    A("s_mov_b64 exec, -1")
    for i in range(4): A(f"ds_read_b128 {Q4(120+4*i)}, v7 offset:{2*i*QP}")
    A("s_waitcnt vmcnt(0)\nv_cmp_ne_u32 vcc, s68, v15\ns_waitcnt lgkmcnt(0)")
    for r in range(120, 136): A(f"v_bfi_b32 v{r}, s71, v13, v{r}")
    A("s_branch L_qslow" if opt.get("forceslow") else "s_cbranch_vccnz L_qslow")
    for i in range(4): A(f"buffer_store_dwordx4 {Q4(120+4*i)}, v14, s[44:47], s{50+i} offen")
    A("s_branch L_qpd\nL_qslow:")
    for i in range(4): A(f"buffer_store_dwordx4 {Q4(120+4*i)}, v14, s[44:47], s{50+i} offen sc1")
    A("s_branch L_qpd\nL_noqp:")
    tl2(); hello()
    A("s_waitcnt vmcnt(1)\nL_qpd:\ns_setprio 0")
    g.stamp("v2")
    tloop(g, opt, 2, "b")
    A(f"""L_tend:
    v_and_b32 v2, 48, v0
    v_add_u32 v2, {L_TS}, v2
    s_nop 5""")
    for m in (8, 4, 2, 1):
        for r in range(104, 112): A(f"v_add_f32_dpp v{r}, v{r}, v{r} row_ror:{m} row_mask:0xf bank_mask:0xf")
    A("s_mov_b32 exec_lo, 0x00010001\ns_mov_b32 exec_hi, 0x00000001")
    for r in range(8): A(f"ds_add_f32 v2, v{104+r} offset:{(r%4)*4 + (r//4)*NT*2}")
    A(f"""s_mov_b64 exec, 1
    ds_add_rtn_u32 v1, v255, v254 offset:{F_T}
    s_waitcnt lgkmcnt(0)
    v_readfirstlane_b32 s62, v1
    s_mov_b64 exec, -1
    s_cmp_lg_u32 s62, 3
    s_cbranch_scc1 L_vload
    v_lshlrev_b32 v2, 4, v0
    v_mul_u32_u24 v3, 24, v0
    v_add_u32 v3, {L_TS}, v3
    s_mov_b64 exec, 15
    ds_read_b64 v[12:13], v3
    ds_read_b64 v[14:15], v3 offset:8
    ds_read_b64 v[16:17], v3 offset:16
    ds_read_b32 v11, v255 offset:{F_TAG}
    s_lshl_b32 s62, s2, 6
    s_add_u32 s62, s62, {WS_T}
    s_lshl_b32 s66, s67, 16
    s_waitcnt lgkmcnt(0)""")
    for k in range(3): A(f"v_pk_add_f32 {P(12+2*k)}, {P(12+2*k)}, s[66:67] op_sel_hi:[1,0]\nv_cvt_pk_bf16_f32 v{8+k}, v{12+2*k}, v{13+2*k}")
    A(f"""s_setprio 3
    buffer_store_dwordx4 v[8:11], v2, s[44:47], s62 offen sc1
    s_setprio 0
    s_mov_b64 exec, -1""")
    g.C("---- V stream: 1024 rows x 128 bytes per workgroup, transposed in registers as it lands")
    A(f"""L_vload:
    v_lshrrev_b32 v1, 3, v0
    v_and_b32 v3, 7, v0
    v_lshlrev_b32 v2, 4, v3
    v_lshl_add_u32 v2, v1, 9, v2
    s_lshl_b32 s50, s3, 12
    s_lshl_b32 s51, s32, 7
    s_add_u32 s50, s50, s51
    s_add_u32 s50, s50, s34
    s_add_u32 s67, s3, 4
    s_movk_i32 s73, 16384
    v_and_b32 v4, 1, v0
    v_lshlrev_b32 v5, 7, v4
    v_and_b32 v6, 4, v0
    v_lshl_add_u32 v5, v6, 4, v5
    v_and_b32 v6, 48, v0
    s_lshl_b32 s51, s3, 10
    s_add_u32 s51, s51, {L_P}
    v_add3_u32 v252, v5, v6, s51
    v_bfe_u32 v5, v0, 3, 1
    v_lshl_add_u32 v4, v5, 1, v4
    v_mul_u32_u24 v4, {OP}, v4
    v_and_b32 v5, 16, v0
    v_lshl_add_u32 v4, v5, 1, v4
    v_and_b32 v5, 6, v0
    v_lshl_add_u32 v4, v5, 2, v4
    s_mul_i32 s51, s3, {4*OP}
    s_add_u32 s51, s51, {L_O}
    v_add_u32 v253, s51, v4""")
    g.srd(36, 8, 0x8000000)
    consumer_prep(g, "s67", "L_vprep")
    A(f"s_cmp_eq_u32 s75, {CONS_S if opt.get('consfast', 1) else 99}\ns_cselect_b64 vcc, -1, 0")
    if opt.get("fastj"): A(f"s_lshr_b32 s51, {opt['fastj']}, s33\ns_and_b32 s51, s51, 1\ns_cselect_b64 vcc, -1, vcc")
    g.stamp("v3")
    g.lds_wait(F_KISS, 4, opt.get("spin", 1))
    VLAG = opt.get("vlag", 10)
    def vpair(p, outstanding):
        u, t = divmod(p, 4)
        A(f"s_waitcnt vmcnt({outstanding})")
        g.transpose_pair(40 + 32 * u, 8 + 32 * u, t)
    def vmma(u, j):
        a = 168 + 4 * j
        A(f"v_mfma_f32_16x16x32_bf16 {Q4(a)}, {Q4(200+4*u)}, {Q4(8+32*u+4*j)}, " + ("0" if u == 0 else Q4(a)))
    np_ = 0
    for i in range(32):
        if i > VTHR: A(f"s_cbranch_vccnz L_vt{i}\ns_waitcnt vmcnt({VTHR})\nL_vt{i}:")
        A(f"buffer_load_dwordx4 {Q4(40+4*i)}, v2, s[36:39], s50 offen nt")
        if i < 31: A("s_add_u32 s50, s50, s73")
        if i - (2 * np_ + 1) >= VLAG:
            vpair(np_, i - (2 * np_ + 1)); np_ += 1
    g.stamp("v4")
    while np_ < 12: vpair(np_, 30 - 2 * np_); np_ += 1
    g.lds_wait(F_P, 2)
    for u in range(4): A(f"ds_read_b128 {Q4(200+4*u)}, v252 offset:{u*256}")
    A("s_waitcnt lgkmcnt(0)")
    g.stamp("v5")
    for u in range(3):
        for j in range(8): vmma(u, j)
    g.stamp("w1")
    while np_ < 15: vpair(np_, 30 - 2 * np_); np_ += 1
    A("s_waitcnt vmcnt(0)")
    g.stamp("w2")
    def vadd(j):
        a = 168 + 4 * j; r = 216 + (j & 1) + 2 * (j >> 2)
        if j & 2: A(f"v_add_f32_dpp v{r}, v{a}, v{a+1} row_ror:8 row_mask:0xf bank_mask:0xc")
        else:     A(f"v_add_f32_dpp v{r}, v{a+1}, v{a} row_ror:8 row_mask:0xf bank_mask:0x3")
    def vperm(j): A(f"v_perm_b32 v{104 + 4*j + 3}, v{164 + j//2}, v{160 + j//2}, s{76 + j%2}")
    vperm(0); vperm(1); vperm(2)
    for j in range(8):
        vmma(3, j)
        if j + 3 < 8: vperm(j + 3)
        if j >= 5: vadd(j - 5)
    vadd(3); A("s_mov_b32 exec_hi, 0"); vadd(4)
    A("v_cvt_pk_bf16_f32 v220, v216, v217")
    for j in (5, 6, 7): vadd(j)
    A("v_cvt_pk_bf16_f32 v221, v218, v219\nds_write_b64 v253, v[220:221]")
    A(f"s_cmp_lg_u32 s75, {CONS_S}\ns_mov_b64 exec, -1\ns_waitcnt lgkmcnt(0)")
    g.stamp("v6")
    A("s_barrier\ns_cbranch_scc1 L_fin")

def finish(g, opt):
    A = g.A
    PB = opt.get("pollbound", 0x4000)
    g.C("================= finishing workgroup: gather the 32 partial rows of this batch (4 per wave)")
    A(f"L_gather:\nds_read_b32 v38, v255 offset:{F_TAG}")
    for p in range(4): A(f"buffer_load_dwordx4 {Q4(48+4*p)}, v244, s[44:47], s64 offen offset:{p*1024} sc1")
    A(f"s_mov_b32 s52, 0xf\ns_mov_b32 s78, {PB}\ns_mov_b32 s62, {(ELO*128) * 0x10001}\ns_mov_b32 s63, 0xfffe")
    for r in list(range(16, 24)) + list(range(40, 47)): A(f"v_mov_b32 v{r}, 0")
    for k in range(3):
        A(f"v_lshlrev_b32 v{8+2*k}, 16, v{240+k}\nv_and_b32 v{9+2*k}, 0xffff0000, v{240+k}")
    A(f"""v_lshlrev_b32 v14, 16, v243
    v_mov_b32 v15, 0
    v_mov_b32 v36, {f32(1/448)}
    v_mov_b32 v37, {f32(1e-5)}
    s_waitcnt lgkmcnt(0)
    L_pchk:
    s_waitcnt vmcnt(0)""")
    for p in range(4):
        r = 48 + 4 * p
        A(f"""s_bitcmp0_b32 s52, {p}
        s_cbranch_scc1 L_pc{p}
        v_cmp_ne_u32_sdwa vcc, v{r+3}, v38 src0_sel:WORD_0 src1_sel:WORD_0
        s_cbranch_vccz L_pa{p}
        buffer_load_dwordx4 {Q4(r)}, v244, s[44:47], s64 offen offset:{p*1024} sc1
        s_branch L_pc{p}
        L_pa{p}:
        v_and_b32 v{r+3}, 0xffff0000, v{r+3}""")
        for k in range(3): A(f"v_dot2c_f32_bf16 v{16+2*k}, v{r+k}, v249\nv_dot2c_f32_bf16 v{17+2*k}, v{r+k}, v250")
        A(f"v_add_f32 v22, v22, v{r+3}\ns_andn2_b32 s52, s52, {1 << p}\ns_cbranch_scc0 L_pok\nL_pc{p}:")
    A(f"""s_sub_u32 s78, s78, 1
    s_cbranch_scc0 L_pchk
    s_waitcnt vmcnt(0)
    L_pok:
    ds_write_b128 v245, v[16:19]
    ds_write_b128 v245, v[20:23] offset:1024
    s_mov_b64 exec, 1
    ds_add_rtn_u32 v1, v255, v254 offset:{F_FIN}
    s_mov_b64 exec, -1""")
    def hread(k): A(f"ds_read_b128 {Q4(104+8*k)}, v246 offset:{k*HP}\nds_read_b128 {Q4(108+8*k)}, v246 offset:{k*HP + 1024}")
    for k in range(6): hread(k)
    A(f"""s_waitcnt lgkmcnt(12)
    v_readfirstlane_b32 s51, v1
    s_cmp_lg_u32 s51, 7
    s_cbranch_scc1 L_fin""")
    g.stamp("f3", True)
    for k in range(8):
        if k < 2: A("s_waitcnt lgkmcnt(10)"); hread(6 + k)
        else: A(f"s_waitcnt lgkmcnt({14-2*k})")
        for q in range(0, 8, 2): A(f"v_pk_add_f32 {P(8+q)}, {P(8+q)}, {P(104+8*k+q)}")
    g.C("h = v8..v14.  LN(LN(h)) = (h - mean) * rsqrt(var + eps) * rsqrt(var / (var + eps) + eps)")
    A(f"""v_pk_mul_f32 v[18:19], v[8:9], v[8:9]
    v_pk_add_f32 v[16:17], v[8:9], v[10:11]
    v_pk_fma_f32 v[18:19], v[10:11], v[10:11], v[18:19]
    v_pk_add_f32 v[16:17], v[16:17], v[12:13]
    v_pk_fma_f32 v[18:19], v[12:13], v[12:13], v[18:19]
    v_add_f32 v16, v16, v14
    v_fmac_f32 v18, v14, v14
    v_add_f32 v16, v16, v17
    v_add_f32 v18, v18, v19""")
    g.wave_reduce("v_add_f32", ["v16", "v18"])
    A(f"""v_mul_f32 v16, v16, v36
    v_mul_f32 v18, v18, v36
    v_fma_f32 v18, -v16, v16, v18
    v_max_f32 v18, 0, v18
    v_add_f32 v19, v37, v18
    v_rsq_f32 v19, v19
    v_readlane_b32 s60, v16, 63
    v_mul_f32 v18, v18, v19
    v_fma_f32 v18, v18, v19, v37
    v_rsq_f32 v18, v18
    v_pk_add_f32 v[24:25], v[8:9], s[60:61] op_sel_hi:[1,0] neg_lo:[0,1] neg_hi:[0,1]
    v_mul_f32 v18, v18, v19
    v_pk_add_f32 v[26:27], v[10:11], s[60:61] op_sel_hi:[1,0] neg_lo:[0,1] neg_hi:[0,1]
    v_readlane_b32 s56, v18, 63
    v_pk_add_f32 v[28:29], v[12:13], s[60:61] op_sel_hi:[1,0] neg_lo:[0,1] neg_hi:[0,1]
    v_subrev_f32 v30, s60, v14""")
    for q in range(24, 30, 2): A(f"v_pk_mul_f32 {P(q)}, {P(q)}, s[56:57] op_sel_hi:[1,0]")
    A("v_mul_f32 v30, s56, v30")
    for q in range(4): A(f"v_cvt_pk_bf16_f32 v{24+q}, v{24+2*q}, v{25+2*q if q < 3 else 30}")
    for q in range(4): A(f"v_pk_sub_u16 v{28+q}, v{24+q}, s62")
    for q in range(7):
        A(f"v_lshlrev_b32_sdwa v{16+q}, 1, v{28+q//2} dst_sel:DWORD dst_unused:UNUSED_PAD src0_sel:DWORD src1_sel:WORD_{q%2}")
        A(f"ds_read_u16_d16_hi v{40+q}, v{16+q} offset:{L_TPOS}")
    for q in range(7): A(f"v_and_b32 v{16+q}, s63, v{16+q}")
    g.umax("v1", range(16, 23))
    A(f"v_cmp_le_u32 vcc, {128*NT*2}, v1")
    if not opt.get("nofb"): A("s_cbranch_vccnz L_fallback")
    A("L_fbret:\ns_waitcnt lgkmcnt(0)")
    A(f"""v_pk_add_f32 v[8:9], v[8:9], v[40:41]
    v_pk_add_f32 v[10:11], v[10:11], v[42:43]
    v_cvt_pk_bf16_f32 v8, v8, v9
    v_cvt_pk_bf16_f32 v9, v10, v11
    global_store_dwordx2 v247, v[8:9], s[24:25]
    v_pk_add_f32 v[12:13], v[12:13], v[44:45]
    v_add_f32 v14, v14, v46
    v_cvt_pk_bf16_f32 v10, v12, v13
    v_cvt_pk_bf16_f32 v11, v14, v14
    global_store_dword v248, v10, s[24:25] offset:512
    global_store_short v251, v11, s[24:25] offset:768
    s_cmp_lg_u32 s31, 0
    s_cbranch_scc1 L_noe
    s_mov_b64 exec, 1
    buffer_store_dword v38, off, s[44:47], 0 offset:{WS_E}
    L_noe:""")
    g.stamp("f8")

def fallback(g, opt):
    A = g.A
    g.C("================= rare path: a normalised value outside the table, evaluate the mixer MLP for it directly")
    A(f"""L_fallback:
    s_load_dword s67, s[22:23], 0
    v_lshlrev_b32 v2, 2, v0""")
    for k in range(3):
        for i in range(14): A(f"global_load_dword v{48+14*k+i}, v2, s[{16+2*k}:{17+2*k}] offset:{i*256}")
    A(f"v_mov_b32 v92, {f32(K1)}\nv_mov_b32 v93, {f32(K0)}\ns_waitcnt vmcnt(0) lgkmcnt(0)\ns_lshl_b32 s67, s67, 16")
    for k in range(42):
        A(f"v_lshlrev_b32 v{104+2*k}, 16, v{48+k}\nv_and_b32 v{105+2*k}, 0xffff0000, v{48+k}")
    for q in range(7):
        A(f"v_lshlrev_b32 v{48+q}, 16, v{24+q//2}" if q % 2 == 0 else f"v_and_b32 v{48+q}, 0xffff0000, v{24+q//2}")
    A(f"""s_mov_b32 s54, 0
    L_fbq:
    v_cmp_le_u32 vcc, {128*NT*2}, v16
    s_mov_b64 s[72:73], vcc
    L_fbl:
    s_cmp_eq_u64 s[72:73], 0
    s_cbranch_scc1 L_fbn
    s_ff1_i32_b64 s53, s[72:73]
    s_bitset0_b64 s[72:73], s53
    v_readlane_b32 s60, v48, s53
    v_mov_b32 v94, 0
    v_mov_b32 v95, 0""")
    for i in range(14):
        A(f"""v_pk_fma_f32 v[96:97], {P(104+2*i)}, s[60:61], {P(132+2*i)} op_sel_hi:[1,0,1]
        v_pk_mul_f32 v[98:99], v[96:97], v[96:97]
        v_pk_fma_f32 v[98:99], v[98:99], v[92:93], v[92:93] op_sel:[0,0,1] op_sel_hi:[1,0,1]
        v_pk_mul_f32 v[98:99], v[98:99], v[96:97]
        v_exp_f32 v98, v98
        v_exp_f32 v99, v99
        v_pk_mul_f32 v[96:97], v[96:97], {P(160+2*i)}
        v_pk_add_f32 v[98:99], v[98:99], 1.0 op_sel_hi:[1,0]
        v_rcp_f32 v98, v98
        v_rcp_f32 v99, v99
        v_pk_fma_f32 v[94:95], v[96:97], v[98:99], v[94:95]""")
    A("v_add_f32 v94, v94, v95")
    g.wave_reduce("v_add_f32", ["v94"])
    A(f"""v_add_f32 v94, s67, v94
    s_mov_b32 m0, s53
    v_readlane_b32 s60, v94, 63
    v_writelane_b32 v40, s60, m0
    s_branch L_fbl
    L_fbn:""")
    g.C("rotate the 7 element slots so that the loop body always works on slot 0")
    for base in (16, 48, 40):
        A(f"v_mov_b32 v1, v{base}")
        for q in range(6): A(f"v_mov_b32 v{base+q}, v{base+q+1}")
        A(f"v_mov_b32 v{base+6}, v1")
    A("s_add_u32 s54, s54, 1\ns_cmp_lt_u32 s54, 7\ns_cbranch_scc1 L_fbq\ns_branch L_fbret")

def gen(**opt):
    g = G(**opt); A = g.A
    dbg = opt.get("stamps") or opt.get("probe")
    A(f"; @launch grid=(256,1,1) block=(512,1,1) lds=163840")
    for l in opt.get("header", "").split("\n"):
        if l: g.C(l)
    A('.amdgcn_target "amdgcn-amd-amdhsa--gfx950"')
    A(f".text\n.globl {KN}\n.p2align 8\n.type {KN},@function\n{KN}:")
    g.stamp("x0")
    A(f"""s_cmpk_ge_u32 s2, 256
    s_cbranch_scc1 L_end
    s_load_dwordx2 s[36:37], s[0:1], 8
    s_load_dwordx2 s[40:41], s[0:1], 32
    s_load_dwordx2 s[44:45], s[0:1], 96
    s_load_dwordx16 s[4:19], s[0:1], 0
    s_load_dwordx8 s[20:27], s[0:1], 64
    v_readfirstlane_b32 s3, v0
    v_and_b32 v0, 63, v0
    s_and_b32 s30, s2, 7
    s_lshr_b32 s33, s2, 3
    s_lshr_b32 s31, s2, 5
    s_and_b32 s32, s33, 3
    s_lshl3_add_u32 s35, s31, s30
    s_lshl_b32 s34, s35, 21
    s_add_u32 s34, s34, 0x180000
    s_lshr_b32 s3, s3, 6
    s_mov_b32 s46, {WS_SIZE}
    s_mov_b32 s47, 0x20000
    s_mov_b32 s76, 0x05040100
    s_mov_b32 s77, 0x07060302
    s_movk_i32 s71, 0xff
    v_mov_b32 v255, {L_FL}
    v_mov_b32 v254, 1
    s_cmp_eq_u32 s30, s31
    s_cselect_b32 s75, s32, 7""")
    if dbg:
        A("s_mov_b32 s74, s3")
        for k in range(8): A(f"s_mov_b32 s{82+2*k}, 0")
    A("""s_cmp_eq_u32 s3, 7
    s_cbranch_scc1 L_ctrl
    s_cmp_ge_u32 s3, 4
    s_cbranch_scc1 L_vwave""")
    g.C("s30 hkv, s31 b, s32 s (quarter), s33 wg>>3, s34 K/V byte base, s35 b*8+hkv, s75 == %d <=> finishing workgroup" % CONS_S)
    k_wave(g, opt)
    v_wave(g, opt)
    finish(g, opt)
    A("L_fin:")
    if opt.get("stamps") and not opt.get("dbgout"):
        A("s_waitcnt lgkmcnt(0)\ns_mov_b64 exec, 1")
        for k in range(9): A(f"v_mov_b32 v{8+k}, s{80+2*k}")
        A(f"""s_getreg_b32 s50, hwreg(HW_REG_XCC_ID)
        v_mov_b32 v17, s50
        v_mov_b32 v18, s78
        v_mov_b32 v19, 0
        s_lshl_b32 s50, s2, 3
        s_add_u32 s50, s50, s74
        s_lshl_b32 s50, s50, 6
        s_add_u32 s50, s50, {WS_STAMP}
        buffer_store_dwordx4 v[8:11], off, s[44:47], s50
        buffer_store_dwordx4 v[12:15], off, s[44:47], s50 offset:16
        buffer_store_dwordx4 v[16:19], off, s[44:47], s50 offset:32""")
    if opt.get("dbgout"):
        A(f"""s_waitcnt lgkmcnt(0)
        s_cmp_lg_u32 s74, 4
        s_cbranch_scc1 L_nodbg
        s_mov_b64 exec, 1
        s_getreg_b32 s50, hwreg(HW_REG_XCC_ID, 0, 3)
        s_lshl_b32 s50, s50, 2
        v_mov_b32 v8, s50
        s_and_b32 s80, s80, 0xffff
        s_and_b32 s92, s92, 0xffff
        v_mov_b32 v9, s80
        v_mov_b32 v10, s92
        global_atomic_umax v8, v9, s[26:27] sc1
        global_atomic_umax v8, v10, s[26:27] offset:32 sc1
        L_nodbg:""")
    pr = opt.get("probe")
    if pr:
        k = int(pr["k"][1])
        A(f"s_waitcnt lgkmcnt(0)\ns_cmp_eq_u32 s{80+2*k}, 0\ns_cbranch_scc1 L_end")
        if pr.get("wave") is not None: A(f"s_cmp_lg_u32 s74, {pr['wave']}\ns_cbranch_scc1 L_end")
        if pr.get("wg") is not None: A(f"s_cmp_lg_u32 s2, {pr['wg']}\ns_cbranch_scc1 L_end")
        A(f"""s_sub_u32 s50, s{80+2*k}, s80
        s_mul_i32 s50, s50, {pr['K']}
        s_add_u32 s50, s50, {pr.get('base', 4000)}
        s_min_u32 s50, s50, 100000
        L_probe:
        s_memrealtime s[52:53]
        s_waitcnt lgkmcnt(0)
        s_sub_u32 s52, s52, s80
        s_cmp_lt_u32 s52, s50
        s_cbranch_scc1 L_probe""")
    A("L_end:\ns_endpgm\nL_code_end:")
    fallback(g, opt)
    A(f""".section .rodata,"a"
    .p2align 6
    .amdhsa_kernel {KN}
    .amdhsa_next_free_vgpr 256
    .amdhsa_next_free_sgpr 102
    .amdhsa_accum_offset 256
    .amdhsa_group_segment_fixed_size 0
    .amdhsa_kernarg_size 104
    .amdhsa_user_sgpr_count 2
    .amdhsa_user_sgpr_kernarg_segment_ptr 1
    .amdhsa_system_sgpr_workgroup_id_x 1
    .amdhsa_float_denorm_mode_32 3
    .end_amdhsa_kernel""")
    txt = hazard.autofix("\n".join(g.L) + "\n", opt.get("verbose"))
    if opt.get("nont"): txt = txt.replace(" nt", "")
    return txt

if __name__ == "__main__":
    out = sys.argv[1] if len(sys.argv) > 1 else "k.s"
    opt = eval("dict(%s)" % (sys.argv[2] if len(sys.argv) > 2 else ""))
    open(out, "w").write(gen(**opt))
```
